```python
import torch

def _softmax(x, axis=-1):
    return torch.softmax(x, dim=axis)
def _gelu(x):
    return torch.nn.functional.gelu(x, approximate="tanh")
def _silu(x):
    return torch.nn.functional.silu(x)
def _sigmoid(x):
    return torch.sigmoid(x)
def _layernorm(x, axis=-1, eps=1e-5):
    m = x.mean(dim=axis, keepdim=True)
    v = x.var(dim=axis, keepdim=True, unbiased=False)
    return (x - m) / torch.sqrt(v + eps)
def _scatter_add(tgt, idx, src, axis=0):
    return tgt.clone().index_add_(axis, idx, src)
def _segment_sum(src, seg, n):
    out = torch.zeros((n,) + src.shape[1:], dtype=src.dtype)
    return out.index_add_(0, seg, src)
def _pad(x, pw):
    flat = tuple(v for pair in reversed(pw) for v in pair)
    return torch.nn.functional.pad(x, flat)

kernel_name = 'interleave_layers__spectral_gfnet__mixer_channel_mlp__prompt'

def setup_inputs():

    _w = (lambda a: (lambda t: t.to(torch.bfloat16) if t.is_floating_point() else t)(torch.as_tensor(a)))
    def _A_setup():
        B, S, D = 1, 2048, 640
        Df = D // 2 + 1
        return {
            "x": _w((lambda *s: torch.randn(*s, dtype=torch.bfloat16) * 0.05)(B, S, D)),
            "w_r": _w((lambda *s: torch.randn(*s, dtype=torch.bfloat16) * 0.8)(S, Df) * 0.02),
            "w_i": _w((lambda *s: torch.randn(*s, dtype=torch.bfloat16) * 0.8)(S, Df) * 0.02),
        }
    _A_in = _A_setup()

    def _B_setup():
        B, S, D, F = 1, 2048, 640, 1728
        return {
            "x": _w((lambda *s: torch.randn(*s, dtype=torch.bfloat16) * 0.05)(B, S, D)),
            "w1": _w((lambda *s: torch.randn(*s, dtype=torch.bfloat16) * 0.8)(D, F) * (D ** -0.5)),
            "b1": _w((lambda *s: torch.randn(*s, dtype=torch.bfloat16) * 0.4)(F)),
            "w2": _w((lambda *s: torch.randn(*s, dtype=torch.bfloat16) * 0.05)(F, D) * (F ** -0.5)),
            "b2": _w((lambda *s: torch.randn(*s, dtype=torch.bfloat16) * 0.05)(D)),
        }
    _B_in = _B_setup()

    return {
        "A_x": _A_in["x"],
        "A_w_r": _A_in["w_r"],
        "A_w_i": _A_in["w_i"],
        "B_x": _B_in["x"],
        "B_w1": _B_in["w1"],
        "B_b1": _B_in["b1"],
        "B_w2": _B_in["w2"],
        "B_b2": _B_in["b2"],
    }

def reference(A_x, A_w_r, A_w_i, B_x, B_w1, B_b1, B_w2, B_b2):
    def _A_ref(x, w_r, w_i):
        B, S, D = x.shape
        X = (lambda x, axes=(-2,-1): torch.fft.rfft2(x.float(), dim=axes))(x, axes=(-2, -1))
        W = w_r + 1j * w_i
        X = X * W
        y = (lambda x, s, axes=(-2,-1): torch.fft.irfft2(x, s=s, dim=axes).to(torch.bfloat16))(X, (S, D), axes=(-2, -1))
        return y

    def _B_ref(x, w1, b1, w2, b2):
        y = _layernorm(x, axis=-1)
        h = _gelu(torch.einsum("bsd,df->bsf", y, w1) + b1)
        return torch.einsum("bsf,fd->bsd", h, w2) + b2

    x = A_x
    x = x + _A_ref(_layernorm(x, axis=-1), A_w_r, A_w_i)
    x = x + _B_ref(_layernorm(x, axis=-1), B_w1, B_b1, B_w2, B_b2)
    x = x + _A_ref(_layernorm(x, axis=-1), A_w_r, A_w_i)
    x = x + _B_ref(_layernorm(x, axis=-1), B_w1, B_b1, B_w2, B_b2)
    return x
```

```python
import re

REG_RE = re.compile(r'\b([vas])\[(\d+):(\d+)\]|\b([vas])(\d+)\b|\b(vcc|exec|m0|vcc_lo|vcc_hi|exec_lo|exec_hi|scc)\b')
TRANS = ('v_exp_f32', 'v_log_f32', 'v_rcp_f32', 'v_rsq_f32', 'v_sqrt_f32', 'v_sin_f32', 'v_cos_f32')


def regs_of(text):
    out = []
    for m in REG_RE.finditer(text):
        if m.group(1):
            out += [(m.group(1), i) for i in range(int(m.group(2)), int(m.group(3)) + 1)]
        elif m.group(4):
            out.append((m.group(4), int(m.group(5))))
        else:
            n = m.group(6)
            out.append(('x', n.split('_')[0]))
    return out


def split_ops(s):
    ops, depth, cur = [], 0, ''
    for ch in s:
        if ch == '[':
            depth += 1
        elif ch == ']':
            depth -= 1
        if ch == ',' and depth == 0:
            ops.append(cur.strip())
            cur = ''
        else:
            cur += ch
    if cur.strip():
        ops.append(cur.strip())
    return ops


class Ins:
    __slots__ = ('text', 'op', 'kind', 'wr', 'rd', 'srcc', 'passes', 'data', 'dpp', 'states')

    def __init__(self, text):
        self.text = text
        parts = text.split(None, 1)
        self.op = op = parts[0]
        rest = parts[1] if len(parts) > 1 else ''
        rest_ops = re.split(r'\s+(?=offen|offset|op_sel|neg_|sc0|sc1|nt\b|row_|quad_perm|bank_mask|bound_ctrl|clamp|mul:|div:|cbsz|blgp|abid|lds\b|idxen|dst_sel|src0_sel|src1_sel|dst_unused)', rest, maxsplit=1)[0]
        ops = split_ops(rest_ops)
        self.wr, self.rd, self.srcc, self.data = [], [], [], []
        self.passes = 0
        self.dpp = ('_dpp' in op) or ('row_' in rest) or ('quad_perm' in rest)
        self.states = 1
        R = lambda l: [r for o in l for r in regs_of(o)]
        if op.startswith('v_mfma'):
            self.kind = 'mfma'
            self.passes = 8 if '32x32' in op else 4
            self.wr = R(ops[:1]); self.rd = R(ops[1:3]); self.srcc = R(ops[3:4])
        elif op.startswith('v_cmp'):
            self.kind = 'valu'
            self.wr = R(ops[:1]); self.rd = R(ops[1:])
            if op.startswith('v_cmpx'):
                self.wr.append(('x', 'exec'))
        elif op.startswith('v_swap') or op.startswith('v_permlane'):
            self.kind = 'valu'
            self.wr = R(ops[:2]); self.rd = R(ops[:2])
        elif op.startswith('v_'):
            self.kind = 'valu'
            n = 2 if ('_co_' in op and len(ops) >= 4) else 1
            self.wr = R(ops[:n]); self.rd = R(ops[n:])
            base = re.sub(r'_(e32|e64|dpp|sdwa)$', '', op)
            if base in ('v_fmac_f32', 'v_dot2c_f32_bf16', 'v_mac_f32', 'v_pk_fmac_f16') or self.dpp or 'writelane' in op:
                self.rd += R(ops[:1])
            if base.startswith('v_cndmask') and len(ops) == 3:
                self.rd.append(('x', 'vcc'))
        elif op.startswith('buffer_load') or op.startswith('global_load'):
            self.kind = 'vload'
            if ' lds' in text or '_lds_' in op:
                self.rd = R(ops) + [('x', 'm0')]
            else:
                self.wr = R(ops[:1]); self.rd = R(ops[1:])
                if 'd16' in op:
                    self.rd += R(ops[:1])
        elif op.startswith('buffer_store') or op.startswith('buffer_atomic'):
            self.kind = 'vstore'
            self.rd = R(ops); self.data = R(ops[:1])
        elif op.startswith('global_store') or op.startswith('global_atomic'):
            self.kind = 'vstore'
            self.rd = R(ops); self.data = R(ops[1:2])
        elif op.startswith('ds_read') or op.startswith('ds_bpermute') or op.startswith('ds_swizzle') or op.startswith('ds_permute'):
            self.kind = 'dsr'
            self.wr = R(ops[:1]); self.rd = R(ops[1:])
            if 'd16' in op:
                self.rd += R(ops[:1])
        elif op.startswith('ds_'):
            self.kind = 'dsw'
            self.rd = R(ops)
            if 'addtid' in op:
                self.rd.append(('x', 'm0'))
        elif op.startswith('s_load') or op.startswith('s_memtime') or op.startswith('s_memrealtime'):
            self.kind = 'smem'
            self.wr = R(ops[:1]); self.rd = R(ops[1:])
        elif op == 's_nop':
            self.kind = 'nop'
            self.states = int(rest) + 1
        elif op in ('s_waitcnt', 's_barrier', 's_endpgm', 's_sleep', 's_setprio', 's_branch') or op.startswith('s_cbranch'):
            self.kind = 'ctl'
            if 'vcc' in op:
                self.rd = [('x', 'vcc')]
            if 'exec' in op:
                self.rd = [('x', 'exec')]
        elif op.startswith('s_cmp') or op.startswith('s_bitcmp'):
            self.kind = 'salu'
            self.rd = R(ops)
        elif op.startswith('s_'):
            self.kind = 'salu'
            self.wr = R(ops[:1]); self.rd = R(ops[1:])
            if 'saveexec' in op:
                self.wr.append(('x', 'exec')); self.rd.append(('x', 'exec'))
        else:
            raise ValueError('unknown instruction: ' + text)


class Asm:
    def __init__(self):
        self.lines = []
        self.hists = [[]]
        self.vm = []
        self.lg = []
        self.sm = set()
        self.nlabel = 0
        self.count = 0

    def raw(self, s):
        self.lines.append(s)

    def comment(self, s):
        self.lines.append('    ; ' + s)

    def label(self, name):
        self.lines.append(name + ':')

    def newlabel(self, p='L'):
        self.nlabel += 1
        return '%s_%d' % (p, self.nlabel)

    def reset(self):
        self.hists, self.vm, self.lg, self.sm = [[]], [], [], set()

    def save(self):
        return ([list(h) for h in self.hists], [set(x) for x in self.vm], [set(x) for x in self.lg], set(self.sm))

    def restore(self, st):
        self.hists = [list(h) for h in st[0]]
        self.vm = [set(x) for x in st[1]]
        self.lg = [set(x) for x in st[2]]
        self.sm = set(st[3])

    def merge(self, *sts):
        self.hists = [list(h) for st in sts for h in st[0]]
        u = lambda k: set().union(*[x for st in sts for x in st[k]]) if any(st[k] for st in sts) else None
        self.vm = [u(1)] if u(1) is not None else []
        self.lg = [u(2)] if u(2) is not None else []
        self.sm = set().union(*[st[3] for st in sts])

    def _emit(self, ins):
        self.lines.append('    ' + ins.text)
        for h in self.hists:
            h.append(ins)
            if len(h) > 24:
                h.pop(0)
        if len(self.hists) > 1 and all(h == self.hists[0] for h in self.hists):
            self.hists = self.hists[:1]
        self.count += 1

    def wait(self, vm=None, lg=None):
        parts = []
        if vm is not None:
            vm = min(vm, 63)
            if len(self.vm) > vm or vm == 0:
                parts.append('vmcnt(%d)' % vm)
                self.vm = self.vm[len(self.vm) - vm:] if vm else []
        if lg is not None:
            lg = min(lg, 15)
            if len(self.lg) > lg or lg == 0:
                parts.append('lgkmcnt(%d)' % lg)
                self.lg = self.lg[len(self.lg) - lg:] if lg else []
                if lg == 0:
                    self.sm = set()
        if parts:
            self._emit(Ins('s_waitcnt ' + ' '.join(parts)))

    def _auto_wait(self, ins):
        touched = set(ins.rd) | set(ins.wr) | set(ins.srcc)
        nv = nl = None
        for i in range(len(self.vm) - 1, -1, -1):
            if self.vm[i] & touched:
                nv = len(self.vm) - 1 - i
                break
        for i in range(len(self.lg) - 1, -1, -1):
            if self.lg[i] & touched:
                nl = len(self.lg) - 1 - i
                break
        if self.sm & touched or (self.sm and nl is not None):
            nl = 0
        if ins.kind == 'vload' and nv is not None:
            rdset = set(ins.rd)
            if not any(s & rdset for s in self.vm):
                nv = None
        if ins.kind == 'dsr' and nl is not None and not (self.sm & touched):
            rdset = set(ins.rd)
            if not any(s & rdset for s in self.lg):
                nl = None
        if nv is not None or nl is not None:
            self.wait(vm=nv, lg=nl)

    def _need(self, p, c):
        pw, cr, cw = set(p.wr), set(c.rd) | set(c.srcc), set(c.wr)
        vg = lambda s: {r for r in s if r[0] in 'va'}
        sg = lambda s: {r for r in s if r[0] == 's' or r == ('x', 'vcc')}
        n = 0
        if p.kind == 'mfma':
            big = {4: 8, 8: 12}[p.passes]
            if c.kind == 'mfma':
                if pw & set(c.rd):
                    n = max(n, big)
                if pw & set(c.srcc):
                    if not (p.wr == c.srcc and p.passes == c.passes):
                        n = max(n, big - 2)
                elif pw & cw:
                    n = max(n, big)
            elif c.kind in ('valu', 'vload', 'vstore', 'dsr', 'dsw') and pw & (cr | cw):
                n = max(n, big)
            if c.kind == 'valu' and set(p.srcc) & cw:
                n = max(n, {4: 3, 8: 7}[p.passes])
        if p.kind == 'valu':
            isdot = p.op.startswith('v_dot')
            if c.kind == 'mfma' and vg(pw) & cr:
                n = max(n, 3 if isdot else 2)
            if c.kind == 'mfma' and ('x', 'exec') in pw:
                n = max(n, 4)
            if isdot and pw & (cr | cw) and c.kind != 'salu':
                same_c = c.op == p.op and not (pw & set(c.rd[:2]))
                if not same_c:
                    n = max(n, 3)
            if c.kind == 'valu':
                if c.dpp and vg(pw) & cr:
                    n = max(n, 2)
                if c.dpp and ('x', 'exec') in pw:
                    n = max(n, 5)
                if c.op.startswith('v_permlane') and vg(pw) & cr:
                    n = max(n, 2)
                if ('readlane' in c.op or 'readfirstlane' in c.op) and vg(pw) & cr:
                    n = max(n, 1)
                if ('readlane' in c.op or 'readfirstlane' in c.op or 'writelane' in c.op or 'permlane' in c.op) and ('x', 'exec') in pw:
                    n = max(n, 4)
                if ('readlane' in c.op or 'writelane' in c.op) and sg(pw) & cr:
                    n = max(n, 4)
                if sg(pw) & cr:
                    n = max(n, 2)
                if re.sub(r'_(e32|e64)$', '', p.op) in TRANS and pw & cr:
                    n = max(n, 1)
                if ('op_sel' in p.text and not p.op.startswith('v_pk') and not isdot or 'sdwa' in p.op) and pw & (cr | cw):
                    n = max(n, 1)
            if c.kind in ('vload', 'vstore') and sg(pw) & cr:
                n = max(n, 5)
            if c.kind in ('salu', 'ctl', 'smem') and (sg(pw) | ({('x', 'exec')} & pw)) & cr:
                n = max(n, 4)
        if p.kind == 'vstore' and len(p.data) >= 3 and set(p.data) & cw:
            n = max(n, 2)
        if p.kind == 'salu' and ('x', 'm0') in pw and ('x', 'm0') in cr:
            n = max(n, 1)
        return n

    def _pad(self, ins):
        need = 0
        for h in self.hists:
            dist = 0
            for p in reversed(h):
                k = self._need(p, ins) - dist
                need = max(need, k)
                dist += p.states
                if dist >= 20:
                    break
        while need > 0:
            k = min(need, 16)
            self._emit(Ins('s_nop %d' % (k - 1)))
            need -= k

    def __call__(self, text):
        for t in text.strip().split('\n'):
            t = t.strip()
            if not t:
                continue
            ins = Ins(t)
            self._auto_wait(ins)
            self._pad(ins)
            self._emit(ins)
            if ins.kind == 'vload':
                self.vm.append(set(ins.wr))
            elif ins.kind == 'vstore':
                self.vm.append(set())
            elif ins.kind == 'dsr':
                self.lg.append(set(ins.wr))
            elif ins.kind == 'dsw':
                self.lg.append(set())
            elif ins.kind == 'smem':
                self.sm |= set(ins.wr)

    def text(self):
        return '\n'.join(self.lines) + '\n'


def v(i, n=1):
    return 'v%d' % i if n == 1 else 'v[%d:%d]' % (i, i + n - 1)


def a(i, n=1):
    return 'a%d' % i if n == 1 else 'a[%d:%d]' % (i, i + n - 1)


def s(i, n=1):
    return 's%d' % i if n == 1 else 's[%d:%d]' % (i, i + n - 1)


def r(i, n=1):
    return v(i, n) if i < 256 else a(i - 256, n)
```

```python
from common import *
from k1 import mfma16, cvt

E1, E2 = 0, 16384


class ColRegs:
    def __init__(self, base):
        R = Regs(base)
        self.B1 = R(8, 4)
        self.TWF = R(16, 2)
        self.FC = R(8, 4)
        self.FS = R(8, 4)
        self.FN = R(8, 4)
        self.TWI = R(16, 2)
        self.LA = R(8, 4)
        self.X = R(16, 4)
        self.W = R(16, 4)
        self.D = R(32, 4)
        self.D2 = R(32, 4)
        self.SQ = self.D2 + 16
        self.T = R(8, 2)
        self.VX, self.VW1, self.VR1, self.VW2, self.VR2 = [R() for _ in range(5)]
        self.VWT = self.T + 2
        self.end = R.n


def col_tables(A, M, C):
    T, LANE = C.T, M.LANE
    JF, GF, RF = T + 4, T + 5, T + 6
    CS, SN = C.D, C.D + 8
    A('v_and_b32 v%d, 15, v%d' % (T, LANE))
    A('v_lshlrev_b32 v%d, 2, v%d' % (T + 1, T))
    A('v_add_u32 v%d, s%d, v%d' % (T + 1, M.S_WV, T + 1))
    A('v_cvt_f32_ubyte0 v%d, v%d' % (JF, T + 1))
    A('v_lshrrev_b32 v%d, 4, v%d' % (T + 1, LANE))
    A('v_cvt_f32_ubyte0 v%d, v%d' % (GF, T + 1))
    A('v_mul_f32 v%d, v%d, v%d' % (T + 2, JF, GF))
    A('v_mul_f32 v%d, %s, v%d' % (T + 3, fl(4.0 / 64), T + 2))
    for i in range(4):
        A('v_fmamk_f32 v%d, v%d, %s, v%d' % (T, JF, fl(i / 64.0), T + 3))
        A('v_cos_f32 v%d, v%d' % (CS + i, T))
        A('v_sin_f32 v%d, v%d' % (SN + i, T))
    for i in range(4):
        cvt(A, C.B1 + i, CS + i, SN + i)
        cvt(A, C.B1 + 4 + i, SN + i, CS + i, True, False)
    A('v_mul_f32 v%d, %s, v%d' % (T + 3, fl(-8.0 / 2048), T + 2))
    for i in range(8):
        A('v_fmamk_f32 v%d, v%d, %s, v%d' % (T, JF, fl(-i / 2048.0), T + 3))
        A('v_cos_f32 v%d, v%d' % (C.TWF + i, T))
        A('v_sin_f32 v%d, v%d' % (C.TWF + 8 + i, T))
    A('v_and_b32 v%d, 15, v%d' % (T, LANE))
    A('v_and_b32 v%d, 12, v%d' % (T + 1, LANE))
    A('v_add_u32 v%d, v%d, v%d' % (T, T, T + 1))
    A('v_cvt_f32_ubyte0 v%d, v%d' % (RF, T))
    for i in range(2):
        if i:
            A('v_add_f32 v%d, 4.0, v%d' % (T + 7, RF))
        mm = T + 7 if i else RF
        A('v_mul_f32 v%d, v%d, v%d' % (T + 2, mm, GF))
        A('v_mul_f32 v%d, %s, v%d' % (T + 3, fl(0.25), T + 2))
        for j in range(8):
            A('v_fmamk_f32 v%d, v%d, %s, v%d' % (T, mm, fl(j / 32.0), T + 3))
            A('v_cos_f32 v%d, v%d' % (CS + j, T))
            A('v_sin_f32 v%d, v%d' % (SN + j, T))
        for j in range(4):
            cvt(A, C.FC + 4 * i + j, CS + 2 * j, CS + 2 * j + 1)
            cvt(A, C.FS + 4 * i + j, SN + 2 * j, SN + 2 * j + 1)
            cvt(A, C.FN + 4 * i + j, SN + 2 * j, SN + 2 * j + 1, True, True)
    A('v_cvt_f32_ubyte0 v%d, s%d' % (T, M.S_WV))
    A('v_fmamk_f32 v%d, v%d, %s, v%d' % (JF, GF, fl(16.0), T))
    for ib in range(2):
        mm = T + 7 if ib else RF
        A('v_mul_f32 v%d, v%d, v%d' % (T + 2, mm, JF))
        A('v_mul_f32 v%d, %s, v%d' % (T + 3, fl(1.0 / 2048), T + 2))
        for t in range(4):
            A('v_fmamk_f32 v%d, v%d, %s, v%d' % (T, mm, fl(4.0 * t / 2048), T + 3))
            A('v_cos_f32 v%d, v%d' % (C.TWI + 4 * ib + t, T))
            A('v_sin_f32 v%d, v%d' % (C.TWI + 8 + 4 * ib + t, T))
    A('v_bfe_u32 v%d, v%d, 1, 3' % (T, LANE))
    A('v_cvt_f32_ubyte0 v%d, v%d' % (RF, T))
    A('v_and_b32 v%d, 1, v%d' % (T, LANE))
    A('v_cvt_f32_ubyte0 v%d, v%d' % (T + 1, T))
    A('v_mul_f32 v%d, %s, v%d' % (T + 1, fl(-0.25), T + 1))
    for tau in range(2):
        if tau:
            A('v_add_f32 v%d, %s, v%d' % (RF, fl(8.0), RF))
        A('v_mul_f32 v%d, v%d, v%d' % (T + 2, RF, JF))
        A('v_fmamk_f32 v%d, v%d, %s, v%d' % (T + 3, T + 2, fl(1.0 / 64), T + 1))
        for t in range(4):
            A('v_fmamk_f32 v%d, v%d, %s, v%d' % (T, RF, fl(4.0 * t / 64), T + 3))
            A('v_cos_f32 v%d, v%d' % (CS + t, T))
            A('v_sin_f32 v%d, v%d' % (SN + t, T))
        for t in range(4):
            cvt(A, C.LA + 4 * tau + t, CS + t, SN + t, False, True)
    A('v_bfe_u32 v%d, v0, 1, 2' % T)
    A('v_bfe_u32 v%d, v0, 3, 2' % (T + 1))
    A('s_lshl_b32 s%d, s%d, 2' % (M.S_A, M.S_WV))
    A('v_or_b32 v%d, s%d, v%d' % (T + 1, M.S_A, T + 1))
    A('v_lshlrev_b32 v%d, 1, v%d' % (T + 2, T))
    A('v_xor_b32 v%d, v%d, v%d' % (T + 1, T + 1, T + 2))
    A('v_lshlrev_b32 v%d, 4, v%d' % (T + 1, T + 1))
    A('v_lshl_add_u32 v%d, v%d, 8, v%d' % (T + 1, T, T + 1))
    A('v_bfe_u32 v%d, v0, 5, 1' % T)
    A('v_lshl_add_u32 v%d, v%d, 10, v%d' % (T + 1, T, T + 1))
    A('v_and_b32 v%d, 1, v0' % T)
    A('v_lshl_add_u32 v%d, v%d, 3, v%d' % (C.VW1, T, T + 1))
    A('v_lshrrev_b32 v%d, 4, v%d' % (T, LANE))
    A('v_lshlrev_b32 v%d, 1, v%d' % (T + 1, T))
    A('v_xor_b32 v%d, v%d, v%d' % (T + 1, T + 1, LANE))
    A('v_lshlrev_b32 v%d, 4, v%d' % (T + 1, T + 1))
    A('s_lshl_b32 s%d, s%d, 12' % (M.S_A, M.S_WV))
    A('v_add_u32 v%d, s%d, v%d' % (C.VR1, M.S_A, T + 1))
    A('v_and_b32 v%d, 7, v%d' % (T + 1, LANE))
    A('v_xor_b32 v%d, v%d, v%d' % (T + 1, T + 1, T))
    A('v_lshlrev_b32 v%d, 4, v%d' % (T + 1, T + 1))
    A('v_and_b32 v%d, 15, v%d' % (T, LANE))
    A('v_and_b32 v%d, 12, v%d' % (T + 2, LANE))
    A('v_add_u32 v%d, v%d, v%d' % (T, T, T + 2))
    A('v_lshl_add_u32 v%d, v%d, 7, v%d' % (T + 1, T, T + 1))
    A('s_lshl_b32 s%d, s%d, 13' % (M.S_A, M.S_WV))
    A('v_add_u32 v%d, s%d, v%d' % (C.VW2, M.S_A, T + 1))
    A('v_bfe_u32 v%d, v0, 3, 2' % T)
    A('v_bfe_u32 v%d, v0, 6, 1' % (T + 1))
    A('v_lshl_add_u32 v%d, v%d, 2, v%d' % (T, T + 1, T))
    A('v_xor_b32 v%d, v0, v%d' % (T, T))
    A('v_lshlrev_b32 v%d, 4, v%d' % (C.VR2, T))
    A('v_lshrrev_b32 v%d, 3, v0' % T)
    A('v_and_b32 v%d, 7, v0' % (T + 1))
    A('v_lshlrev_b32 v%d, 4, v%d' % (T + 1, T + 1))
    A('v_lshl_add_u32 v%d, v%d, 9, v%d' % (C.VX, T, T + 1))
    A('s_cmp_eq_u32 s2, 0')
    A('s_cselect_b32 s%d, 0x0c0c0c0c, 0' % M.S_PSEL)
    A('s_cselect_b32 s%d, s%d, 0x01000c0c' % (M.S_PSEL, M.S_PSEL))
    A('s_cselect_b32 s%d, 0, 1.0' % M.S_KEEP)
    A('s_mov_b32 s%d, 1.0' % (M.S_KEEP + 1))


def col_load_w(A, M, C):
    T = C.T
    A('v_lshrrev_b32 v%d, 4, v%d' % (T, M.LANE))
    A('v_and_b32 v%d, 15, v%d' % (T + 1, M.LANE))
    A('v_lshlrev_b32 v%d, 4, v%d' % (T + 1, T + 1))
    A('v_lshl_add_u32 v%d, v%d, 12, v%d' % (C.VWT, T, T + 1))
    A('s_lshl_b32 s%d, s2, 14' % M.S_A)
    A('s_lshl_b32 s%d, s%d, 8' % (M.S_B, M.S_WV))
    A('s_add_u32 s%d, s%d, s%d' % (M.S_A, M.S_A, M.S_B))
    A('s_add_u32 s%d, s%d, 0x%x' % (M.S_A, M.S_A, OFF['WT']))
    for i in range(4):
        A('buffer_load_dwordx4 %s, v%d, %s, s%d offen offset:%d' % (v(C.W + 4 * i, 4), C.VWT, M.WS, M.S_A, 1024 * i))


def col_load_x(A, M, C, xin, ssq, sc):
    T = C.T
    A('s_lshl_b32 s%d, s2, 14' % M.S_A)
    A('s_add_u32 s%d, s%d, 0x%x' % (M.S_A, M.S_A, OFF[xin]))
    A('s_mov_b32 s%d, 0x%x' % (M.S_B, OFF[ssq]))
    A('v_lshlrev_b32 v%d, 5, v0' % T)
    for h in range(2):
        A('buffer_load_dwordx4 %s, v%d, %s, s%d offen offset:%d%s' % (v(C.SQ + 4 * h, 4), T, M.WS, M.S_B, 16 * h, sc))
    for m in range(4):
        A('buffer_load_dwordx4 %s, v%d, %s, s%d offen offset:%d%s' % (v(C.X + 4 * m, 4), C.VX, M.WS, M.S_A, 128 * m, sc))


def cmul(A, ore, oim, re, im, wr, wi):
    A('v_mul_f32 v%d, v%d, v%d' % (ore, re, wr))
    A('v_mul_f32 v%d, v%d, v%d' % (oim, re, wi))
    A('v_fma_f32 v%d, -v%d, v%d, v%d' % (ore, im, wi, ore))
    A('v_fma_f32 v%d, v%d, v%d, v%d' % (oim, im, wr, oim))


def col_body(A, M, C, xout):
    T, D, D2 = C.T, C.D, C.D2
    A('v_mov_b32 v%d, %s' % (T, fl(1e-5 * 2048 * 2048)))
    for i in range(8):
        A('v_fmamk_f32 v%d, v%d, %s, v%d' % (C.SQ + i, C.SQ + i, fl(2048.0 * 2048 / 640), T))
        A('v_rsq_f32 v%d, v%d' % (C.SQ + i, C.SQ + i))
    U = D2
    for x in range(2):
        for e in range(2):
            Z = D + 16 * ((2 * x + e) & 1)
            for m in range(4):
                src = C.X + 4 * m + 2 * x + e
                if e == 0:
                    A('v_perm_b32 v%d, v%d, v%d, s%d' % (Z + 2 * m, src, src, M.S_PSEL))
                else:
                    A('v_lshlrev_b32 v%d, 16, v%d' % (Z + 2 * m, src))
                A('v_and_b32 v%d, 0xffff0000, v%d' % (Z + 2 * m + 1, src))
            sel = 'op_sel:[0,%d] op_sel_hi:[1,%d]' % (x, x)
            sel3 = 'op_sel:[0,%d,0] op_sel_hi:[1,%d,1]' % (x, x)
            P, Mi, Q, N = Z + 8, Z + 10, Z + 12, Z + 14
            for (m0, pp, mm) in ((0, P, Mi), (1, Q, N)):
                A('v_pk_mul_f32 %s, %s, %s %s' % (v(Z + 2 * m0, 2), v(Z + 2 * m0, 2), v(C.SQ + 2 * m0, 2), sel))
                A('v_pk_fma_f32 %s, %s, %s, %s %s' % (v(pp, 2), v(Z + 2 * m0 + 4, 2), v(C.SQ + 2 * m0 + 4, 2), v(Z + 2 * m0, 2), sel3))
                A('v_pk_fma_f32 %s, %s, %s, %s %s neg_lo:[1,0,0] neg_hi:[1,0,0]' % (v(mm, 2), v(Z + 2 * m0 + 4, 2), v(C.SQ + 2 * m0 + 4, 2), v(Z + 2 * m0, 2), sel3))
            A('v_pk_add_f32 %s, %s, %s' % (v(Z, 2), v(P, 2), v(Q, 2)))
            A('v_pk_add_f32 %s, %s, %s op_sel:[0,1] op_sel_hi:[1,0] neg_hi:[0,1]' % (v(Z + 2, 2), v(Mi, 2), v(N, 2)))
            A('v_pk_add_f32 %s, %s, %s neg_lo:[0,1] neg_hi:[0,1]' % (v(Z + 4, 2), v(P, 2), v(Q, 2)))
            A('v_pk_add_f32 %s, %s, %s op_sel:[0,1] op_sel_hi:[1,0] neg_lo:[0,1]' % (v(Z + 6, 2), v(Mi, 2), v(N, 2)))
            for w in range(4):
                cvt(A, U + 4 * w + 2 * e + x, Z + 2 * w, Z + 2 * w + 1)
    for w in range(4):
        for e in range(2):
            A('ds_write_b64 v%d, %s offset:%d' % (C.VW1, v(U + 4 * w + 2 * e, 2), E1 + (2 * w + e) * 2048))
    A.wait(lg=0)
    A('s_barrier')
    AF = D2 + 16
    for e in range(2):
        for i in range(2):
            A('ds_read_b128 %s, v%d offset:%d' % (v(AF + 8 * e + 4 * i, 4), C.VR1, E1 + (2 * e + i) * 1024))
    for e in range(2):
        for c in range(2):
            for i in range(2):
                mfma16(A, D + 16 * e + 8 * c + 4 * i, AF + 8 * e + 4 * i, C.B1 + 4 * c, None)

    def tw_fwd(e):
        for jj in range(4):
            for h in range(2):
                k = 2 * jj + h
                cmul(A, T + h, T + 2 + h, D + 16 * e + k, D + 16 * e + 8 + k, C.TWF + k, C.TWF + 8 + k)
            cvt(A, D + 16 * e + jj, T, T + 1)
            cvt(A, D + 16 * e + 8 + jj, T + 2, T + 3)

    def dft(e):
        br, bi = D + 16 * e, D + 16 * e + 8
        for i in range(2):
            mfma16(A, D2 + 16 * e + 4 * i, C.FC + 4 * i, br, None)
            mfma16(A, D2 + 16 * e + 8 + 4 * i, C.FN + 4 * i, br, None)
        for i in range(2):
            mfma16(A, D2 + 16 * e + 4 * i, C.FS + 4 * i, bi, D2 + 16 * e + 4 * i)
            mfma16(A, D2 + 16 * e + 8 + 4 * i, C.FC + 4 * i, bi, D2 + 16 * e + 8 + 4 * i)

    def filt(e):
        for jj in range(4):
            for h in range(2):
                k = 2 * jj + h
                src = C.W + 4 * jj + 2 * h + e
                A('v_lshlrev_b32 v%d, 16, v%d' % (T + 4, src))
                A('v_and_b32 v%d, 0xffff0000, v%d' % (T + 5, src))
                cmul(A, T + h, T + 2 + h, D2 + 16 * e + k, D2 + 16 * e + 8 + k, T + 4, T + 5)
            cvt(A, D2 + 16 * e + jj, T, T + 1)
            cvt(A, D2 + 16 * e + 8 + jj, T + 2, T + 3)

    def idft(e):
        ar, ai = D2 + 16 * e, D2 + 16 * e + 8
        for i in range(2):
            mfma16(A, D + 16 * e + 4 * i, ar, C.FC + 4 * i, None)
            mfma16(A, D + 16 * e + 8 + 4 * i, ar, C.FS + 4 * i, None)
        for i in range(2):
            mfma16(A, D + 16 * e + 4 * i, ai, C.FN + 4 * i, D + 16 * e + 4 * i)
            mfma16(A, D + 16 * e + 8 + 4 * i, ai, C.FC + 4 * i, D + 16 * e + 8 + 4 * i)

    def tw_inv(e):
        for k in range(8):
            o = T + 2 * (k & 1)
            cmul(A, o, o + 1, D + 16 * e + k, D + 16 * e + 8 + k, C.TWI + k, C.TWI + 8 + k)
            cvt(A, D + 16 * e + k, o, o + 1)

    def last(e):
        for ib in range(2):
            for tau in range(2):
                mfma16(A, D2 + 16 * e + 8 * ib + 4 * tau, C.LA + 4 * tau, D + 16 * e + 4 * ib, None)

    def put(e):
        for ib in range(2):
            for tau in range(2):
                A('ds_write_b128 v%d, %s offset:%d' % (T + 6 + tau, v(D2 + 16 * e + 8 * ib + 4 * tau, 4), E2 + e * 4096 + ib * 512))
    tw_fwd(0); dft(0); tw_fwd(1); dft(1)
    filt(0); idft(0); filt(1); idft(1)
    tw_inv(0); last(0)
    A('v_mov_b32 v%d, v%d' % (T + 6, C.VW2))
    A('v_xor_b32 v%d, 64, v%d' % (T + 7, C.VW2))
    tw_inv(1); put(0); last(1); put(1)
    A.wait(lg=0)
    A('s_barrier')
    for e in range(2):
        for w in range(4):
            A('ds_read_b128 %s, v%d offset:%d' % (v(D + 16 * e + 4 * w, 4), C.VR2, E2 + w * 8192 + e * 4096))
    A('s_lshl_b32 s%d, s2, 14' % M.S_A)
    A('s_add_u32 s%d, s%d, 0x%x' % (M.S_A, M.S_A, OFF[xout]))
    for e in range(2):
        for x in range(2):
            Y = lambda w: v(D + 16 * e + 4 * w + 2 * x, 2)
            Z = D2 + 16 * x
            P, Mi, Q, N = Z + 8, Z + 10, Z + 12, Z + 14
            for m in range(4):
                src = C.X + 4 * m + 2 * x + e
                A('v_lshlrev_b32 v%d, 16, v%d' % (Z + 2 * m, src))
                A('v_and_b32 v%d, 0xffff0000, v%d' % (Z + 2 * m + 1, src))
            A('v_pk_add_f32 %s, %s, %s' % (v(P, 2), Y(0), Y(2)))
            A('v_pk_add_f32 %s, %s, %s neg_lo:[0,1] neg_hi:[0,1]' % (v(Mi, 2), Y(0), Y(2)))
            A('v_pk_add_f32 %s, %s, %s' % (v(Q, 2), Y(1), Y(3)))
            A('v_pk_add_f32 %s, %s, %s neg_lo:[0,1] neg_hi:[0,1]' % (v(N, 2), Y(1), Y(3)))
            A('v_pk_add_f32 %s, %s, %s' % (v(T, 2), v(P, 2), v(Q, 2)))
            A('v_pk_add_f32 %s, %s, %s op_sel:[0,1] op_sel_hi:[1,0] neg_lo:[0,1]' % (v(T + 2, 2), v(Mi, 2), v(N, 2)))
            A('v_pk_add_f32 %s, %s, %s neg_lo:[0,1] neg_hi:[0,1]' % (v(T + 4, 2), v(P, 2), v(Q, 2)))
            A('v_pk_add_f32 %s, %s, %s op_sel:[0,1] op_sel_hi:[1,0] neg_hi:[0,1]' % (v(T + 6, 2), v(Mi, 2), v(N, 2)))
            for m in range(4):
                if e == 0:
                    A('v_pk_fma_f32 %s, %s, s[%d:%d], %s' % (v(Z + 2 * m, 2), v(T + 2 * m, 2), M.S_KEEP, M.S_KEEP + 1, v(Z + 2 * m, 2)))
                else:
                    A('v_pk_add_f32 %s, %s, %s' % (v(Z + 2 * m, 2), v(T + 2 * m, 2), v(Z + 2 * m, 2)))
                cvt(A, C.X + 4 * m + 2 * x + e, Z + 2 * m, Z + 2 * m + 1)
    for m in range(4):
        A('buffer_store_dwordx4 %s, v%d, %s, s%d offen offset:%d sc1' % (v(C.X + 4 * m, 4), C.VX, M.WS, M.S_A, 128 * m))
```

```python
import struct
from asmlib import Asm, v, a, s, r

S, D, F = 2048, 640, 1728
XB = 160 * 2048 * 8
WB = 640 * 1728 * 2
OFF = {}
_cur = 0
def _alloc(name, n):
    global _cur
    OFF[name] = _cur
    _cur += (n + 4095) // 4096 * 4096
for _n in ('X0', 'X1', 'X2', 'X3', 'WT'):
    _alloc(_n, XB)
for _n in ('W1F', 'W2F', 'W2T'):
    _alloc(_n, WB)
_alloc('QF', 640 * 640 * 2)
_alloc('H1', 2048 * 1728 * 2)
_alloc('H2', 2048 * 1728 * 2)
_alloc('SSQ0', 8192)
_alloc('B2F', 4096)
_alloc('ZERO', 0)
_alloc('SSQ2', 8192)
_alloc('FLAGS', 65536 * 3)
WS_USED = _cur
ZERO_BYTES = WS_USED - OFF['ZERO']
OOB = 0x40000000

def f2u(x):
    return struct.unpack('<I', struct.pack('<f', x))[0]

def fl(x):
    return '0x%08x' % f2u(x)

class Regs:
    def __init__(self, start=0):
        self.n = start
        self.max = start
    def __call__(self, n=1, align=1):
        self.n = (self.n + align - 1) // align * align
        x = self.n
        self.n += n
        self.max = max(self.max, self.n)
        return x

def srd(A, dst, ptr, nbytes):
    A('s_mov_b32 s%d, s%d' % (dst, ptr))
    A('s_and_b32 s%d, s%d, 0xffff' % (dst + 1, ptr + 1))
    A('s_mov_b32 s%d, 0x%x' % (dst + 2, nbytes))
    A('s_mov_b32 s%d, 0x00020000' % (dst + 3))

def kernel_header(A, name):
    A.raw('.globl %s' % name)
    A.raw('.p2align 8')
    A.raw('.type %s,@function' % name)
    A.label(name)
    A.reset()

def kernel_desc(name, nvgpr, accum):
    return '''.amdhsa_kernel %s
  .amdhsa_next_free_vgpr %d
  .amdhsa_next_free_sgpr 102
  .amdhsa_accum_offset %d
  .amdhsa_group_segment_fixed_size 0
  .amdhsa_kernarg_size 88
  .amdhsa_user_sgpr_count 2
  .amdhsa_user_sgpr_kernarg_segment_ptr 1
  .amdhsa_system_sgpr_workgroup_id_x 1
.end_amdhsa_kernel
''' % (name, nvgpr, accum)

P_X, P_WR, P_WI, P_W1, P_B1, P_W2, P_B2, P_OUT, P_DBG, P_WS = 4, 6, 8, 12, 14, 16, 18, 20, 22, 24

def load_args(A):
    A('s_load_dwordx16 s[4:19], s[0:1], 0')
    A('s_load_dwordx4 s[20:23], s[0:1], 64')
    A('s_load_dwordx2 s[24:25], s[0:1], 80')
```

```python
import math
from common import *

N_W1, N_WT, N_X, N_W2, N_W2T, N_QF, N_Z = 128, 128, 128, 112, 68, 40, 1
B_W1 = 0
B_WT = B_W1 + N_W1
B_X = B_WT + N_WT
B_W2 = B_X + N_X
B_W2T = B_W2 + N_W2
B_QF = B_W2T + N_W2T
B_Z = B_QF + N_QF
K1_GRID = B_Z + N_Z
K1_LDS = 80 * 272
SC = math.sqrt(2.0 / 640)
RH = math.sqrt(0.5)

S_WV, S_ROLE, S_IDX = 26, 27, 28
SRD_WS, SRD_IN = 32, 36
S_T = 40


def mfma16(A, d, x, y, c):
    A('v_mfma_f32_16x16x32_bf16 %s, %s, %s, %s' % (r(d, 4), r(x, 4), r(y, 4), '0' if c is None else r(c, 4)))


def cvt(A, d, x, y, nx=False, ny=False):
    f = lambda q, n: ('-' if n else '') + r(q) if not isinstance(q, str) else q
    A('v_cvt_pk_bf16_f32 %s, %s, %s' % (r(d), f(x, nx), f(y, ny)))


def emit_k1(A, name):
    kernel_header(A, name)
    load_args(A)
    R = Regs(1)
    LANE, T0, T1, T2, T3, T4, T5 = [R() for _ in range(7)]
    A('v_and_b32 v%d, 63, v0' % LANE)
    A('v_lshrrev_b32 v%d, 6, v0' % T0)
    A('v_readfirstlane_b32 s%d, v%d' % (S_WV, T0))
    A('s_cmp_ge_u32 s2, %d' % K1_GRID)
    A('s_cbranch_scc1 K1_exit')
    srd(A, SRD_WS, P_WS, WS_USED)
    st_top = A.save()
    A('s_cmp_ge_u32 s2, %d' % B_W2T)
    A('s_cbranch_scc1 K1_misc')
    A('s_cmp_ge_u32 s2, %d' % B_X)
    A('s_cbranch_scc1 K1_direct')
    A('s_cmp_ge_u32 s2, %d' % B_WT)
    A('s_cbranch_scc1 K1_wt')

    VLD = R()
    VOA, VOB = R(), R()
    MDC = R()
    B1 = R(8, 4)
    TW = R(16, 2)
    A2 = R(32, 4)
    BF = R(32, 4)
    FR = R(32, 4)
    D1 = R(32, 4)
    DAT = D1
    D2 = FR
    SO = S_T
    S_ROW = S_T + 6

    A('s_and_b32 s%d, s2, 7' % (S_T + 8))
    A('s_lshr_b32 s%d, s2, 5' % (S_T + 9))
    A('s_lshl_b32 s%d, s%d, 3' % (S_T + 9, S_T + 9))
    A('s_add_u32 s%d, s%d, s%d' % (S_T + 8, S_T + 8, S_T + 9))
    A('s_cmp_ge_u32 s%d, 27' % (S_T + 8))
    A('s_cbranch_scc1 K1_exit')
    A('s_bfe_u32 s%d, s2, 0x20003' % (S_T + 9))
    A('s_lshl_b32 s%d, s%d, 2' % (S_IDX, S_T + 8))
    A('s_add_u32 s%d, s%d, s%d' % (S_IDX, S_IDX, S_T + 9))
    A('s_mov_b32 s%d, 1' % S_ROLE)
    srd(A, SRD_IN, P_W1, WB)
    A('v_lshrrev_b32 v%d, 1, v0' % T0)
    A('v_mul_u32_u24 v%d, 3456, v%d' % (VLD, T0))
    A('v_and_b32 v%d, 1, v0' % T0)
    A('v_lshl_add_u32 v%d, v%d, 4, v%d' % (VLD, T0, VLD))
    A('s_lshl_b32 s%d, s%d, 5' % (SO, S_IDX))
    for i in range(1, 5):
        A('s_add_u32 s%d, s%d, %d' % (SO + i, SO + i - 1, 128 * 3456))
    A('s_branch K1_load')
    st_w1 = A.save()

    A.label('K1_direct')
    A.restore(st_top)
    A('s_cmp_ge_u32 s2, %d' % B_W2)
    A('s_cbranch_scc1 K1_dw2')
    A('s_sub_u32 s%d, s2, %d' % (S_IDX, B_X))
    A('s_mov_b32 s%d, 0' % S_ROLE)
    srd(A, SRD_IN, P_X, S * D * 2)
    A('s_and_b32 s%d, s%d, 3' % (S_ROW, S_IDX))
    A('s_lshl_b32 s%d, s%d, 2' % (S_ROW, S_ROW))
    A('s_add_u32 s%d, s%d, s%d' % (S_ROW, S_ROW, S_WV))
    A('s_lshl_b32 s%d, s%d, 2' % (S_ROW, S_ROW))
    A('s_lshr_b32 s%d, s%d, 2' % (S_ROW + 1, S_IDX))
    A('s_lshl_b32 s%d, s%d, 5' % (SO, S_ROW))
    A('s_add_u32 s%d, s%d, s%d' % (SO, SO, S_ROW + 1))
    A('s_mul_i32 s%d, s%d, 1280' % (SO, SO))
    A('s_mov_b32 s%d, %d' % (S_T + 8, 32 * 1280))
    A('s_branch K1_daddr')
    st_a = A.save()
    A.label('K1_dw2')
    A.restore(st_top)
    A('s_sub_u32 s%d, s2, %d' % (S_IDX, B_W2))
    A('s_cmp_gt_u32 s%d, 108' % S_IDX)
    A('s_cbranch_scc1 K1_exit')
    A('s_mov_b32 s%d, 2' % S_ROLE)
    srd(A, SRD_IN, P_W2, WB)
    A('s_lshl_b32 s%d, s%d, 2' % (S_ROW, S_IDX))
    A('s_add_u32 s%d, s%d, s%d' % (S_ROW, S_ROW, S_WV))
    A('s_lshl_b32 s%d, s%d, 2' % (S_ROW, S_ROW))
    A('s_mul_i32 s%d, s%d, 1280' % (SO, S_ROW))
    A('s_mov_b32 s%d, 1280' % (S_T + 8))
    A('s_cmp_lt_u32 s%d, 108' % S_IDX)
    A('s_cbranch_scc1 K1_daddr')
    A('s_cmp_lg_u32 s%d, 0' % S_WV)
    A('s_cbranch_scc1 K1_exit')
    A('s_mov_b32 s%d, 3' % S_ROLE)
    srd(A, SRD_IN, P_B2, 1280)
    A('s_mov_b32 s%d, 0' % SO)
    A.label('K1_daddr')
    A.merge(st_a, A.save())
    A('v_and_b32 v%d, 3, v%d' % (T0, LANE))
    A('v_mul_lo_u32 v%d, v%d, s%d' % (VLD, T0, S_T + 8))
    A('v_lshrrev_b32 v%d, 4, v%d' % (T0, LANE))
    A('v_mul_u32_u24 v%d, 320, v%d' % (T0, T0))
    A('v_add_u32 v%d, v%d, v%d' % (VLD, VLD, T0))
    A('v_bfe_u32 v%d, v%d, 2, 2' % (T0, LANE))
    A('v_lshl_add_u32 v%d, v%d, 4, v%d' % (VLD, T0, VLD))
    for i in range(1, 5):
        A('s_add_u32 s%d, s%d, 64' % (SO + i, SO + i - 1))

    A.label('K1_load')
    A.merge(st_w1, A.save())
    for i in range(5):
        A('buffer_load_dwordx4 %s, v%d, s[%d:%d], s%d offen' % (v(DAT + 4 * i, 4), VLD, SRD_IN, SRD_IN + 3, SO + i))

    KF, GF = T4, T5
    A('v_and_b32 v%d, 15, v%d' % (T0, LANE))
    A('v_cvt_f32_ubyte0 v%d, v%d' % (KF, T0))
    A('v_lshrrev_b32 v%d, 4, v%d' % (T0, LANE))
    A('v_cvt_f32_ubyte0 v%d, v%d' % (GF, T0))
    C, Sn = BF, BF + 8
    A('v_mul_f32 v%d, v%d, v%d' % (T0, KF, GF))
    A('v_mul_f32 v%d, %s, v%d' % (T1, fl(0.25), T0))
    for i in range(5):
        A('v_fmamk_f32 v%d, v%d, %s, v%d' % (T2, KF, fl(0.05 * i), T1))
        A('v_cos_f32 v%d, v%d' % (C + i, T2))
        A('v_sin_f32 v%d, v%d' % (Sn + i, T2))
    cvt(A, B1 + 0, C + 0, C + 1)
    cvt(A, B1 + 1, C + 2, C + 3)
    cvt(A, B1 + 2, C + 4, '0')
    A('v_mov_b32 v%d, 0' % (B1 + 3))
    cvt(A, B1 + 4, Sn + 0, Sn + 1, True, True)
    cvt(A, B1 + 5, Sn + 2, Sn + 3, True, True)
    cvt(A, B1 + 6, Sn + 4, '0', True)
    A('v_mov_b32 v%d, 0' % (B1 + 7))
    A('v_mul_f32 v%d, %s, v%d' % (T1, fl(8.0 / 640), T0))
    for j in range(8):
        A('v_fmamk_f32 v%d, v%d, %s, v%d' % (T2, KF, fl(j / 640.0), T1))
        A('v_cos_f32 v%d, v%d' % (C + j, T2))
        A('v_sin_f32 v%d, v%d' % (Sn + j, T2))
    for j in range(8):
        A('v_mul_f32 v%d, %s, v%d' % (TW + 2 * j, fl(SC), C + j))
        A('v_mul_f32 v%d, %s, v%d' % (TW + 2 * j + 1, fl(-SC), Sn + j))
    A('v_bfe_u32 v%d, v%d, 1, 3' % (T0, LANE))
    A('v_cvt_f32_ubyte0 v%d, v%d' % (T3, T0))
    A('v_and_b32 v%d, 1, v%d' % (T0, LANE))
    A('v_cvt_f32_ubyte0 v%d, v%d' % (T0, T0))
    A('v_fma_f32 v%d, v%d, v%d, v%d' % (T0, T3, GF, T0))
    A('v_mul_f32 v%d, %s, v%d' % (T1, fl(0.25), T0))
    for j in range(8):
        A('v_fmamk_f32 v%d, v%d, %s, v%d' % (T2, T3, fl(j / 32.0), T1))
        A('v_cos_f32 v%d, v%d' % (C + j, T2))
        A('v_sin_f32 v%d, v%d' % (Sn + j, T2))
    rc = lambda j, m: [(C + j, False), (Sn + j, True), (C + j, True), (Sn + j, False)][m & 3]
    rs = lambda j, m: [(Sn + j, False), (C + j, False), (Sn + j, True), (C + j, True)][m & 3]
    for T in range(4):
        for part, f in ((0, rc), (1, rs)):
            for jj in range(4):
                x, y = f(2 * jj, 2 * jj * T), f(2 * jj + 1, (2 * jj + 1) * T)
                cvt(A, A2 + (T * 2 + part) * 4 + jj, x[0], y[0], x[1], y[1])
    A('v_and_b32 v%d, 15, v%d' % (T0, LANE))
    A('v_lshrrev_b32 v%d, 4, v%d' % (T1, LANE))
    A('v_lshl_add_u32 v%d, v%d, 2, v%d' % (T4, T0, T1))
    A('v_cmp_gt_u32 s[%d:%d], 11, v%d' % (S_T + 10, S_T + 11, T0))
    A('v_add_u32 v%d, -1, v%d' % (T0, T0))
    A('v_cmp_gt_u32 s[%d:%d], 9, v%d' % (S_T + 12, S_T + 13, T0))
    A('v_cmp_eq_u32 vcc, 0, v%d' % LANE)
    A('v_mov_b32 v%d, %s' % (T0, fl(RH)))
    A('s_cmp_eq_u32 s%d, 1' % S_ROLE)
    A('s_cbranch_scc0 K1_perm')
    st_pre = A.save()

    A('v_cndmask_b32 v%d, 1.0, 0, vcc' % MDC)
    A('v_lshrrev_b32 v%d, 4, v0' % T0)
    A('v_add_lshl_u32 v%d, v%d, v0, 4' % (T0, T0))
    for i in range(5):
        A('ds_write_b128 v%d, %s offset:%d' % (T0, v(DAT + 4 * i, 4), i * 16 * 272))
    A('v_lshrrev_b32 v%d, 4, v%d' % (T0, LANE))
    A('v_mul_u32_u24 v%d, 20, v%d' % (T0, T0))
    A('v_and_b32 v%d, 3, v%d' % (T1, LANE))
    A('v_add_u32 v%d, v%d, v%d' % (T0, T0, T1))
    A('v_mul_u32_u24 v%d, 272, v%d' % (T0, T0))
    A('s_lshl_b32 s%d, s%d, 3' % (S_T + 8, S_WV))
    A('v_add_u32 v%d, s%d, v%d' % (T0, S_T + 8, T0))
    A('v_bfe_u32 v%d, v%d, 2, 2' % (T1, LANE))
    A('v_mul_u32_u24 v%d, %d, v%d' % (T1, 4 * 272, T1))
    A('v_add_u32 v%d, v%d, v%d' % (T1, T1, T0))
    A.wait(lg=0)
    A('s_barrier')
    for j in range(8):
        A('ds_read_b64_tr_b16 %s, v%d offset:%d' % (v(FR + 4 * j, 2), T1, j * 32))
        A('ds_read_b64_tr_b16 %s, v%d offset:%d' % (v(FR + 4 * j + 2, 2), T0, j * 32 + 16 * 272))
    A('s_lshr_b32 s%d, s%d, 1' % (S_T + 8, S_IDX))
    A('s_mul_i32 s%d, s%d, 40960' % (S_T + 8, S_T + 8))
    A('s_and_b32 s%d, s%d, 1' % (S_T + 9, S_IDX))
    A('s_lshl_b32 s%d, s%d, 8' % (S_T + 9, S_T + 9))
    A('s_add_u32 s%d, s%d, s%d' % (S_T + 8, S_T + 8, S_T + 9))
    A('s_and_b32 s%d, s%d, 1' % (S_T + 9, S_WV))
    A('s_lshl_b32 s%d, s%d, 7' % (S_T + 9, S_T + 9))
    A('s_add_u32 s%d, s%d, s%d' % (S_T + 8, S_T + 8, S_T + 9))
    A('s_lshr_b32 s%d, s%d, 1' % (S_T + 9, S_WV))
    A('s_lshl_b32 s%d, s%d, 6' % (S_T + 9, S_T + 9))
    A('s_add_u32 s%d, s%d, s%d' % (S_T + 8, S_T + 8, S_T + 9))
    A('s_add_u32 s%d, s%d, 0x%x' % (SO, S_T + 8, OFF['W1F']))
    A('v_lshlrev_b32 v%d, 9, v%d' % (VOA, T4))
    A('v_add_u32 v%d, %d, v%d' % (VOB, 40 * 512, VOA))
    A('s_branch K1_core')
    st_w1 = A.save()

    A.label('K1_perm')
    A.restore(st_pre)
    A('v_cndmask_b32 v%d, 1.0, v%d, vcc' % (MDC, T0))
    A('s_mov_b32 s%d, 0x05040100' % (S_T + 8))
    A('s_mov_b32 s%d, 0x07060302' % (S_T + 9))
    for j in range(8):
        w_ = j >> 1
        sel = S_T + 8 + (j & 1)
        A('v_perm_b32 v%d, v%d, v%d, s%d' % (FR + 4 * j, DAT + 4 + w_, DAT + w_, sel))
        A('v_perm_b32 v%d, v%d, v%d, s%d' % (FR + 4 * j + 1, DAT + 12 + w_, DAT + 8 + w_, sel))
        if j & 1:
            A('v_lshrrev_b32 v%d, 16, v%d' % (FR + 4 * j + 2, DAT + 16 + w_))
        else:
            A('v_and_b32 v%d, 0xffff, v%d' % (FR + 4 * j + 2, DAT + 16 + w_))
        A('v_mov_b32 v%d, 0' % (FR + 4 * j + 3))
    A('s_cmp_eq_u32 s%d, 0' % S_ROLE)
    A('s_cbranch_scc0 K1_ow2')
    st_pre = A.save()
    A('s_mov_b32 s%d, 0x3f803f80' % (S_T + 8))
    A('v_mov_b32 v%d, 0' % T0)
    A('v_mov_b32 v%d, 0' % T1)
    for i in range(20):
        A('v_dot2_f32_bf16 v%d, v%d, v%d, v%d' % (T0, DAT + i, DAT + i, T0))
        A('v_dot2_f32_bf16 v%d, v%d, s%d, v%d' % (T1, DAT + i, S_T + 8, T1))
    for rr in (4, 8):
        A('v_add_f32_dpp v%d, v%d, v%d row_ror:%d row_mask:0xf bank_mask:0xf' % (T0, T0, T0, rr))
        A('v_add_f32_dpp v%d, v%d, v%d row_ror:%d row_mask:0xf bank_mask:0xf' % (T1, T1, T1, rr))
    for op in ('v_permlane16_swap_b32', 'v_permlane32_swap_b32'):
        A('v_mov_b32 v%d, v%d' % (T2, T0))
        A('v_mov_b32 v%d, v%d' % (T3, T1))
        A('%s v%d, v%d' % (op, T0, T2))
        A('%s v%d, v%d' % (op, T1, T3))
        A('v_add_f32 v%d, v%d, v%d' % (T0, T0, T2))
        A('v_add_f32 v%d, v%d, v%d' % (T1, T1, T3))
    A('v_mul_f32 v%d, %s, v%d' % (T2, fl(-1.0 / 640), T1))
    A('v_fma_f32 v%d, v%d, v%d, v%d' % (T0, T2, T1, T0))
    A('v_add_u32 v%d, s%d, v%d' % (T1, S_ROW, LANE))
    A('v_bfe_u32 v%d, v%d, 1, 3' % (T2, T1))
    A('v_lshlrev_b32 v%d, 5, v%d' % (T2, T2))
    A('v_lshrrev_b32 v%d, 4, v%d' % (T3, T1))
    A('v_lshl_add_u32 v%d, v%d, 3, v%d' % (T2, T3, T2))
    A('v_and_b32 v%d, 1, v%d' % (T3, T1))
    A('v_lshl_add_u32 v%d, v%d, 2, v%d' % (T2, T3, T2))
    A('v_cmp_gt_u32 s[%d:%d], 4, v%d' % (S_T + 8, S_T + 9, LANE))
    A('v_mov_b32 v%d, 0x%x' % (T3, OOB))
    A('v_cndmask_b32 v%d, v%d, v%d, s[%d:%d]' % (T2, T3, T2, S_T + 8, S_T + 9))
    A('s_lshl_b32 s%d, s%d, 8' % (S_T + 8, S_ROW + 1))
    A('s_add_u32 s%d, s%d, 0x%x' % (S_T + 8, S_T + 8, OFF['SSQ0']))
    A('buffer_store_dword v%d, v%d, s[%d:%d], s%d offen' % (T0, T2, SRD_WS, SRD_WS + 3, S_T + 8))
    A('s_lshl_b32 s%d, s%d, 6' % (SO, S_ROW + 1))
    A('s_add_u32 s%d, s%d, s%d' % (SO, SO, S_ROW))
    A('s_lshl_b32 s%d, s%d, 3' % (SO, SO))
    A('s_add_u32 s%d, s%d, 0x%x' % (SO, SO, OFF['X0']))
    A('s_add_u32 s%d, s%d, 16384' % (SO + 1, SO))
    A('v_lshlrev_b32 v%d, 15, v%d' % (VOA, T4))
    A('v_add_u32 v%d, %d, v%d' % (VOB, 40 * 32768, VOA))
    A('s_branch K1_core')
    st_x = A.save()
    A.label('K1_ow2')
    A.restore(st_pre)
    A('v_lshrrev_b32 v%d, 1, v%d' % (T0, T4))
    A('v_mul_u32_u24 v%d, 52, v%d' % (T1, T0))
    A('v_lshrrev_b32 v%d, 8, v%d' % (T1, T1))
    A('v_mul_u32_u24 v%d, 5, v%d' % (T2, T1))
    A('v_sub_u32 v%d, v%d, v%d' % (T2, T0, T2))
    A('v_mul_u32_u24 v%d, %d, v%d' % (VOA, 54 * 5120, T1))
    A('v_lshl_add_u32 v%d, v%d, 10, v%d' % (VOA, T2, VOA))
    A('v_and_b32 v%d, 1, v%d' % (T0, T4))
    A('v_lshl_add_u32 v%d, v%d, 7, v%d' % (VOA, T0, VOA))
    A('v_add_u32 v%d, %d, v%d' % (VOB, 4 * 54 * 5120, VOA))
    A('s_lshr_b32 s%d, s%d, 5' % (S_T + 8, S_ROW))
    A('s_mul_i32 s%d, s%d, 5120' % (SO, S_T + 8))
    A('s_bfe_u32 s%d, s%d, 0x20003' % (S_T + 8, S_ROW))
    A('s_lshl_b32 s%d, s%d, 8' % (S_T + 8, S_T + 8))
    A('s_add_u32 s%d, s%d, s%d' % (SO, SO, S_T + 8))
    A('s_and_b32 s%d, s%d, 4' % (S_T + 8, S_ROW))
    A('s_lshl_b32 s%d, s%d, 1' % (S_T + 8, S_T + 8))
    A('s_add_u32 s%d, s%d, s%d' % (SO, SO, S_T + 8))
    A('s_add_u32 s%d, s%d, 0x%x' % (SO, SO, OFF['W2F']))
    A('s_cmp_eq_u32 s%d, 2' % S_ROLE)
    A('s_cbranch_scc1 K1_core')
    A('v_lshlrev_b32 v%d, 5, v%d' % (VOA, T4))
    A('v_add_u32 v%d, %d, v%d' % (VOB, 40 * 32, VOA))
    A('s_mov_b32 s%d, 0x%x' % (SO, OFF['B2F']))

    A.label('K1_core')
    A.merge(st_w1, st_x, A.save())
    A('v_mov_b32 v%d, 0x%x' % (T3, OOB))
    A('v_cndmask_b32 v%d, v%d, v%d, s[%d:%d]' % (VOA, T3, VOA, S_T + 10, S_T + 11))
    A('v_cndmask_b32 v%d, v%d, v%d, s[%d:%d]' % (VOB, T3, VOB, S_T + 12, S_T + 13))

    def stage1(jj):
        base = D1 + 16 * (jj & 1)
        for h in range(2):
            mfma16(A, base + 8 * h, FR + 4 * (2 * jj + h), B1, None)
            mfma16(A, base + 8 * h + 4, FR + 4 * (2 * jj + h), B1 + 4, None)

    def twid(jj):
        base = D1 + 16 * (jj & 1)
        for t in range(4):
            for h in range(2):
                re, im = base + 8 * h + t, base + 8 * h + 4 + t
                wr, wi = TW + 2 * (2 * jj + h), TW + 2 * (2 * jj + h) + 1
                A('v_mul_f32 v%d, v%d, v%d' % (T0 + h, re, wr))
                A('v_mul_f32 v%d, v%d, v%d' % (T2 + h, re, wi))
                A('v_fma_f32 v%d, -v%d, v%d, v%d' % (T0 + h, im, wi, T0 + h))
                A('v_fma_f32 v%d, v%d, v%d, v%d' % (T2 + h, im, wr, T2 + h))
            cvt(A, BF + 8 * t + jj, T0, T1)
            cvt(A, BF + 8 * t + 4 + jj, T2, T3)
    stage1(0)
    stage1(1)
    twid(0)
    stage1(2)
    twid(1)
    stage1(3)
    twid(2)
    twid(3)
    for n in range(4):
        for T in range(4):
            mfma16(A, D2 + 16 * n + 4 * T, A2 + 8 * T, BF + 8 * n, None)
        for T in range(4):
            mfma16(A, D2 + 16 * n + 4 * T, A2 + 8 * T + 4, BF + 8 * n + 4, D2 + 16 * n + 4 * T)
    for n in range(4):
        d = D2 + 16 * n
        A('v_mul_f32 v%d, v%d, v%d' % (d, d, MDC))
        A('v_mul_f32 v%d, %s, v%d' % (T0, fl(RH), d + 8))
        A('v_cndmask_b32 v%d, v%d, v%d, vcc' % (d + 1, d + 1, T0))
    O = BF
    A('s_cmp_eq_u32 s%d, 1' % S_ROLE)
    A('s_cbranch_scc1 K1_st1')
    A('s_cmp_eq_u32 s%d, 2' % S_ROLE)
    A('s_cbranch_scc1 K1_st2')
    A('s_cmp_eq_u32 s%d, 3' % S_ROLE)
    A('s_cbranch_scc1 K1_st3')
    st_out = A.save()
    for T in range(4):
        for n in range(4):
            d = D2 + 16 * n + 4 * T
            cvt(A, O + 8 * T + 2 * n, d, d + 1, False, T >= 2)
            cvt(A, O + 8 * T + 2 * n + 1, d + 2, d + 3, False, T >= 2)
        for h in range(2):
            A('buffer_store_dwordx4 %s, v%d, s[%d:%d], s%d offen offset:%d' %
              (v(O + 8 * T + 4 * h, 4), VOB if T >= 2 else VOA, SRD_WS, SRD_WS + 3, SO + (T & 1), 16 * h))
    A('s_endpgm')
    A.label('K1_st1')
    A.restore(st_out)
    for n in range(4):
        for T in range(4):
            d = D2 + 16 * n + 4 * T
            cvt(A, O + 8 * n + 2 * T, d, d + 1, False, T >= 2)
            cvt(A, O + 8 * n + 2 * T + 1, d + 2, d + 3, False, T >= 2)
        for Tp in range(2):
            A('buffer_store_dwordx4 %s, v%d, s[%d:%d], s%d offen offset:%d' %
              (v(O + 8 * n + 4 * Tp, 4), VOB if Tp else VOA, SRD_WS, SRD_WS + 3, SO, 16 * n))
    A('s_endpgm')
    A.label('K1_st2')
    A.restore(st_out)
    for T in range(4):
        for t in range(4):
            ng = T >= 2 and (t & 1) == 1
            o = O + 8 * T + 2 * t
            cvt(A, o, D2 + 4 * T + t, D2 + 16 + 4 * T + t, ng, ng)
            cvt(A, o + 1, D2 + 32 + 4 * T + t, D2 + 48 + 4 * T + t, ng, ng)
            A('buffer_store_dwordx2 %s, v%d, s[%d:%d], s%d offen offset:%d' %
              (v(o, 2), VOB if T >= 2 else VOA, SRD_WS, SRD_WS + 3, SO, (4 * (T & 1) + t) * 16))
    A('s_endpgm')
    A.label('K1_st3')
    A.restore(st_out)
    for T in range(4):
        if T >= 2:
            for t in (1, 3):
                A('v_xor_b32 v%d, 0x80000000, v%d' % (D2 + 4 * T + t, D2 + 4 * T + t))
        A('buffer_store_dwordx4 %s, v%d, s[%d:%d], s%d offen offset:%d' %
          (v(D2 + 4 * T, 4), VOB if T >= 2 else VOA, SRD_WS, SRD_WS + 3, SO, 16 * (T & 1)))
    A.label('K1_exit')
    A('s_endpgm')
    nv = R.max

    A.label('K1_wt')
    A.restore(st_top)
    R = Regs(8)
    RS = 656
    DT = R(40, 4)
    VA, VL, VS = R(), R(), R()
    A('s_sub_u32 s%d, s2, %d' % (S_IDX, B_WT))
    A('s_and_b32 s%d, s%d, 1' % (S_T, S_WV))
    A('s_cmp_eq_u32 s%d, 0' % S_T)
    A('s_cselect_b32 s%d, s%d, s%d' % (SRD_IN, P_WR, P_WI))
    A('s_cselect_b32 s%d, s%d, s%d' % (SRD_IN + 1, P_WR + 1, P_WI + 1))
    A('s_and_b32 s%d, s%d, 0xffff' % (SRD_IN + 1, SRD_IN + 1))
    A('s_mov_b32 s%d, %d' % (SRD_IN + 2, 2048 * 642))
    A('s_mov_b32 s%d, 0x00020000' % (SRD_IN + 3))
    A('s_lshr_b32 s%d, s%d, 3' % (S_T, S_IDX))
    A('s_lshl_b32 s%d, s%d, 7' % (S_T, S_T))
    A('s_lshr_b32 s%d, s%d, 1' % (S_T + 1, S_WV))
    A('s_lshl_b32 s%d, s%d, 6' % (S_T + 1, S_T + 1))
    A('s_add_u32 s%d, s%d, s%d' % (S_T, S_T, S_T + 1))
    A('s_and_b32 s%d, s%d, 1' % (S_T + 1, S_IDX))
    A('s_lshl_b32 s%d, s%d, 5' % (S_T + 1, S_T + 1))
    A('s_add_u32 s%d, s%d, s%d' % (S_T, S_T, S_T + 1))
    A('s_bfe_u32 s%d, s%d, 0x20001' % (S_T + 1, S_IDX))
    A('s_add_u32 s%d, s%d, s%d' % (S_T, S_T, S_T + 1))
    A('s_mul_i32 s%d, s%d, 642' % (S_T, S_T))
    A('s_and_b32 s%d, s%d, 2' % (S_T + 2, S_T))
    A('s_and_b32 s%d, s%d, -4' % (S_T, S_T))
    A('v_lshlrev_b32 v%d, 4, v%d' % (VL, LANE))
    A('v_mov_b32 v%d, 0x%x' % (T0, OOB))
    A('v_cmp_gt_u32 vcc, 41, v%d' % LANE)
    A('v_cndmask_b32 v%d, v%d, v%d, vcc' % (VA, T0, VL))
    for ii in range(8):
        A('buffer_load_dwordx4 %s, v%d, s[%d:%d], s%d offen' % (v(DT + 4 * ii, 4), VA, SRD_IN, SRD_IN + 3, S_T))
        if ii < 7:
            A('s_add_u32 s%d, s%d, %d' % (S_T, S_T, 4 * 642))
    A('s_mul_i32 s%d, s%d, %d' % (S_T, S_WV, 8 * RS))
    A('v_add_u32 v%d, s%d, v%d' % (VL, S_T, VL))
    A('s_mov_b64 s[%d:%d], exec' % (S_T + 4, S_T + 5))
    A('s_mov_b64 exec, vcc')
    for ii in range(8):
        A('ds_write_b128 v%d, %s offset:%d' % (VL, v(DT + 4 * ii, 4), ii * RS))
    A('s_mov_b64 exec, s[%d:%d]' % (S_T + 4, S_T + 5))
    A('v_and_b32 v%d, 7, v0' % T0)
    A('v_mul_u32_u24 v%d, %d, v%d' % (VL, RS, T0))
    A('v_add_u32 v%d, s%d, v%d' % (VL, S_T + 2, VL))
    A('v_lshrrev_b32 v%d, 3, v0' % T1)
    A('v_lshlrev_b32 v%d, 14, v%d' % (VS, T1))
    A('v_lshl_add_u32 v%d, v%d, 4, v%d' % (VS, T0, VS))
    A('s_lshl_b32 s%d, s%d, 7' % (S_T, S_IDX))
    A('s_add_u32 s%d, s%d, 0x%x' % (S_T, S_T, OFF['WT']))
    A('v_bfe_u32 v%d, v0, 3, 1' % T2)
    A('v_mul_u32_u24 v%d, 160, v%d' % (T2, T2))
    A('v_bfe_u32 v%d, v0, 4, 2' % T3)
    A('v_mad_u32_u24 v%d, v%d, 40, v%d' % (T2, T3, T2))
    A('v_add_u32 v%d, s%d, v%d' % (T2, S_WV, T2))
    A.wait(lg=0)
    A('s_barrier')
    EA, EB = R(), R()
    for it in range(5):
        if it < 2:
            A('v_add_u32 v%d, %d, v%d' % (T0, 4 * it, T2))
            A('v_lshl_add_u32 v%d, v%d, 1, v%d' % (EA, T0, VL))
            A('v_add_u32 v%d, 40, v%d' % (EB, EA))
            if it == 0:
                A('v_cmp_gt_u32 vcc, 8, v0')
                A('v_add_u32 v%d, 640, v%d' % (T0, VL))
                A('v_cndmask_b32 v%d, v%d, v%d, vcc' % (EA, EA, T0))
        else:
            A('v_sub_u32 v%d, %d, v%d' % (T0, 330 - 4 * it, T2))
            A('v_lshl_add_u32 v%d, v%d, 1, v%d' % (EA, T0, VL))
            A('v_add_u32 v%d, -40, v%d' % (EB, EA))
            if it == 2:
                A('s_cmp_eq_u32 s%d, 3' % S_WV)
                A('s_cbranch_scc1 K1_wt_hi')
                st = A.save()
                A('v_add_u32 v%d, %d, v%d' % (T0, 4 * it, T2))
                A('v_lshl_add_u32 v%d, v%d, 1, v%d' % (EA, T0, VL))
                A('v_add_u32 v%d, 40, v%d' % (EB, EA))
                A.label('K1_wt_hi')
                A.merge(st, A.save())
        o = DT + 8 * it
        for h in range(2):
            for e, ad in ((0, EA), (1, EB)):
                A('ds_read_u16 v%d, v%d offset:%d' % (o + 2 * h + e, ad, h * 16 * RS))
                A('ds_read_u16 v%d, v%d offset:%d' % (o + 4 + 2 * h + e, ad, h * 16 * RS + 8 * RS))
    for it in range(5):
        o = DT + 8 * it
        for i in range(4):
            A('v_lshl_or_b32 v%d, v%d, 16, v%d' % (o + i, o + 4 + i, o + i))
        A('buffer_store_dwordx4 %s, v%d, s[%d:%d], s%d offen' % (v(o, 4), VS, SRD_WS, SRD_WS + 3, S_T))
        if it < 4:
            A('s_add_u32 s%d, s%d, %d' % (S_T, S_T, 32 * 16384))
    A('s_endpgm')

    A.label('K1_misc')
    A.restore(st_top)
    A('s_cmp_ge_u32 s2, %d' % B_QF)
    A('s_cbranch_scc1 K1_qf')
    R = Regs(8)
    DT = R(32, 4)
    OT = R(32, 4)
    VA, VLO, VHI = R(), R(), R()
    srd(A, SRD_IN, P_W2, WB)
    A('s_sub_u32 s%d, s2, %d' % (S_IDX, B_W2T))
    A('s_lshl_b32 s%d, s%d, 8' % (S_IDX, S_IDX))
    A('v_add_u32 v%d, s%d, v0' % (T0, S_IDX))
    A('v_mul_u32_u24 v%d, 52429, v%d' % (T1, T0))
    A('v_lshrrev_b32 v%d, 22, v%d' % (T1, T1))
    A('v_mul_u32_u24 v%d, 80, v%d' % (T2, T1))
    A('v_sub_u32 v%d, v%d, v%d' % (T2, T0, T2))
    A('v_mul_u32_u24 v%d, %d, v%d' % (VA, 8 * 1280, T1))
    A('v_lshl_add_u32 v%d, v%d, 4, v%d' % (VA, T2, VA))
    A('s_mov_b32 s%d, 3840' % S_T)
    A('s_mov_b32 s%d, 7680' % (S_T + 1))
    for i in range(8):
        so = '0' if i < 3 else 's%d' % (S_T + i // 3 - 1)
        A('buffer_load_dwordx4 %s, v%d, s[%d:%d], %s offen offset:%d' %
          (v(DT + 4 * i, 4), VA, SRD_IN, SRD_IN + 3, so, (i % 3) * 1280))
    A('v_mul_u32_u24 v%d, 205, v%d' % (T3, T2))
    A('v_lshrrev_b32 v%d, 11, v%d' % (T3, T3))
    A('v_mul_u32_u24 v%d, 10, v%d' % (T4, T3))
    A('v_sub_u32 v%d, v%d, v%d' % (T4, T2, T4))
    A('v_mul_u32_u24 v%d, %d, v%d' % (VLO, 54 * 5120, T3))
    A('v_lshrrev_b32 v%d, 2, v%d' % (T3, T1))
    A('v_mul_u32_u24 v%d, 5120, v%d' % (T3, T3))
    A('v_add_u32 v%d, v%d, v%d' % (VLO, VLO, T3))
    A('v_and_b32 v%d, 3, v%d' % (T3, T1))
    A('v_lshl_add_u32 v%d, v%d, 8, v%d' % (VLO, T3, VLO))
    A('v_lshrrev_b32 v%d, 2, v%d' % (T3, T4))
    A('v_lshl_add_u32 v%d, v%d, 11, v%d' % (VLO, T3, VLO))
    A('v_and_b32 v%d, 3, v%d' % (T3, T4))
    A('v_cmp_gt_u32 vcc, 8, v%d' % T4)
    A('v_lshlrev_b32 v%d, 6, v%d' % (T5, T3))
    A('v_lshlrev_b32 v%d, 7, v%d' % (T3, T3))
    A('v_cndmask_b32 v%d, v%d, v%d, vcc' % (T3, T3, T5))
    A('v_add_u32 v%d, v%d, v%d' % (VLO, VLO, T3))
    A('v_mov_b32 v%d, 1024' % T5)
    A('v_cndmask_b32 v%d, 64, v%d, vcc' % (T3, T5))
    A('v_cmp_gt_u32 vcc, 216, v%d' % T1)
    A('v_mov_b32 v%d, 0x%x' % (T5, OOB))
    A('v_cndmask_b32 v%d, v%d, v%d, vcc' % (VLO, T5, VLO))
    A('v_add_u32 v%d, v%d, v%d' % (VHI, VLO, T3))
    A('s_mov_b32 s%d, 0x05040100' % (S_T + 2))
    A('s_mov_b32 s%d, 0x07060302' % (S_T + 3))
    A('s_mov_b32 s%d, 0x%x' % (S_T + 4, OFF['W2T']))
    for i in range(8):
        for p in range(4):
            A('v_perm_b32 v%d, v%d, v%d, s%d' % (OT + 4 * i + p, DT + 4 * (2 * p + 1) + (i >> 1), DT + 4 * (2 * p) + (i >> 1), S_T + 2 + (i & 1)))
        A('buffer_store_dwordx4 %s, v%d, s[%d:%d], s%d offen offset:%d' %
          (v(OT + 4 * i, 4), VHI if i >= 4 else VLO, SRD_WS, SRD_WS + 3, S_T + 4, (i & 3) * 16))
    A('s_endpgm')

    A.label('K1_qf')
    A.restore(st_top)
    A('s_cmp_ge_u32 s2, %d' % B_Z)
    A('s_cbranch_scc1 K1_zero')
    R = Regs(8)
    KK = R(4)
    OT = R(20, 4)
    DP, DN, VS, CS, SN = R(), R(), R(), R(), R()
    A('s_sub_u32 s%d, s2, %d' % (S_IDX, B_QF))
    A('s_lshl_b32 s%d, s%d, 2' % (S_IDX, S_IDX))
    A('s_add_u32 s%d, s%d, s%d' % (S_IDX, S_IDX, S_WV))
    A('s_mul_i32 s%d, s%d, 205' % (S_T, S_IDX))
    A('s_lshr_b32 s%d, s%d, 12' % (S_T, S_T))
    A('s_mul_i32 s%d, s%d, 20' % (S_T + 1, S_T))
    A('s_sub_u32 s%d, s%d, s%d' % (S_T + 1, S_IDX, S_T + 1))
    A('s_add_u32 s%d, s%d, 310' % (S_T + 2, S_T + 1))
    A('s_cmp_ge_u32 s%d, 11' % (S_T + 1))
    A('s_cselect_b32 s%d, s%d, s%d' % (S_T + 2, S_T + 2, S_T + 1))
    A('s_cselect_b32 s%d, %s, %s' % (S_T + 3, fl(SC), '0'))
    A('s_cselect_b32 s%d, s%d, %s' % (S_T + 3, S_T + 3, fl(-SC)))
    A('v_lshrrev_b32 v%d, 4, v%d' % (T0, LANE))
    A('v_mul_u32_u24 v%d, 40, v%d' % (T0, T0))
    A('v_add_u32 v%d, s%d, v%d' % (T0, S_T + 2, T0))
    A('v_cvt_f32_u32 v%d, v%d' % (KK, T0))
    A('v_add_f32 v%d, %s, v%d' % (KK + 1, fl(20), KK))
    A('v_add_f32 v%d, %s, v%d' % (KK + 2, fl(160), KK))
    A('v_add_f32 v%d, %s, v%d' % (KK + 3, fl(180), KK))
    A('s_mul_i32 s%d, s%d, 80' % (S_T, S_T))
    A('v_and_b32 v%d, 15, v%d' % (T0, LANE))
    A('v_add_u32 v%d, s%d, v%d' % (T1, S_T, T0))
    A('v_cvt_f32_u32 v%d, v%d' % (DN, T1))
    A('v_and_b32 v%d, 12, v%d' % (T0, LANE))
    A('v_add_u32 v%d, v%d, v%d' % (T1, T1, T0))
    A('v_cvt_f32_u32 v%d, v%d' % (DP, T1))
    A('v_lshlrev_b32 v%d, 4, v%d' % (VS, LANE))
    A('s_mul_i32 s%d, s%d, 5120' % (S_T, S_IDX))
    A('s_add_u32 s%d, s%d, 0x%x' % (S_T, S_T, OFF['QF']))
    A('s_add_u32 s%d, s%d, 4096' % (S_T + 4, S_T))
    hb = f2u(math.sqrt(1.0 / 640))
    hb = (hb + 0x7fff + ((hb >> 16) & 1)) >> 16
    A('v_and_b32 v%d, 1, v%d' % (T0, LANE))
    A('v_lshlrev_b32 v%d, 31, v%d' % (T0, T0))
    A('v_or_b32 v%d, 0x%x, v%d' % (T5, hb * 0x10001, T0))
    A('s_cmp_eq_u32 s%d, 0' % (S_T + 1))
    A('s_cselect_b32 s%d, 16, 0' % (S_T + 5))
    A('v_cmp_gt_u32 vcc, s%d, v%d' % (S_T + 5, LANE))
    for ct in range(5):
        dof = 64 if ct == 4 else 32 * (ct >> 1) + 4 * (ct & 1)
        A('v_add_f32 v%d, %s, v%d' % (T4, fl(dof), DN if ct == 4 else DP))
        for i in range(4):
            A('v_mul_f32 v%d, v%d, v%d' % (T0, T4, KK + i))
            A('v_mul_f32 v%d, %s, v%d' % (T1, fl(1.0 / 640), T0))
            A('v_floor_f32 v%d, v%d' % (T1, T1))
            A('v_fmamk_f32 v%d, v%d, %s, v%d' % (T0, T1, fl(-640), T0))
            A('v_mul_f32 v%d, %s, v%d' % (T0, fl(1.0 / 640), T0))
            A('v_cos_f32 v%d, v%d' % (CS, T0))
            A('v_sin_f32 v%d, v%d' % (SN, T0))
            A('v_mul_f32 v%d, %s, v%d' % (CS, fl(SC), CS))
            A('v_mul_f32 v%d, s%d, v%d' % (SN, S_T + 3, SN))
            cvt(A, OT + 4 * ct + i, CS, SN)
        A('v_cndmask_b32 v%d, v%d, v%d, vcc' % (OT + 4 * ct, OT + 4 * ct, T5))
        A('buffer_store_dwordx4 %s, v%d, s[%d:%d], s%d offen offset:%d' %
          (v(OT + 4 * ct, 4), VS, SRD_WS, SRD_WS + 3, S_T + 4 if ct == 4 else S_T, (ct & 3) * 1024))
    A('s_endpgm')

    A.label('K1_zero')
    A.restore(st_top)
    for i in range(4):
        A('v_mov_b32 v%d, 0' % (8 + i))
    A('v_lshlrev_b32 v%d, 4, v0' % T0)
    A('s_mov_b32 s%d, 0x%x' % (S_T, OFF['ZERO']))
    A.label('K1_zloop')
    A('buffer_store_dwordx4 v[8:11], v%d, s[%d:%d], s%d offen' % (T0, SRD_WS, SRD_WS + 3, S_T))
    A('s_add_u32 s%d, s%d, 4096' % (S_T, S_T))
    A('s_cmp_lt_u32 s%d, 0x%x' % (S_T, WS_USED))
    A('s_cbranch_scc1 K1_zloop')
    A('s_endpgm')
    nv = (nv + 7) // 8 * 8
    return nv
```

```python
from common import *
from col import *
from mlp import *


class M:
    LANE, VL16, VM = 1, 2, 3
    S_WV, S_T, S_N, S_PA, S_HASB = 26, 27, 28, 29, 30
    WS, B1, OUT, B2 = 's[32:35]', 's[36:39]', 's[40:43]', 's[44:47]'
    S_A, S_B, S_C, S_W, S_W2, S_H, S_PSEL = 48, 49, 50, 51, 52, 53, 54
    S_KEEP = 56
    S_HT = 58


def prologue(A, name):
    kernel_header(A, name)
    load_args(A)
    A('v_and_b32 v%d, 63, v0' % M.LANE)
    A('v_lshrrev_b32 v%d, 6, v0' % M.VM)
    A('v_readfirstlane_b32 s%d, v%d' % (M.S_WV, M.VM))
    A('v_lshlrev_b32 v%d, 4, v%d' % (M.VL16, M.LANE))
    A('s_cmp_ge_u32 s2, 256')
    A('s_cbranch_scc1 %s_exit' % name)
    A('s_and_b32 s%d, s2, 7' % M.S_T)
    A('s_lshl_b32 s%d, s%d, 2' % (M.S_T, M.S_T))
    A('s_bfe_u32 s%d, s2, 0x20003' % M.S_N)
    A('s_add_u32 s%d, s%d, s%d' % (M.S_T, M.S_T, M.S_N))
    A('s_lshr_b32 s%d, s2, 5' % M.S_N)
    srd(A, 32, P_WS, WS_USED)
    srd(A, 36, P_B1, F * 2)
    srd(A, 40, P_OUT, S * D * 2)
    srd(A, 44, P_B2, D * 2)


def epilogue(A, name):
    A.label('%s_exit' % name)
    A('s_endpgm')


def emit_multi(A, launches, descs, opts):
    C = ColRegs(4)
    G = G1Regs(4)
    assert C.end <= 192 and G.end <= 192
    wf = [256 + 4 * i for i in range(64)] + [232 + 4 * i for i in range(6)]
    stop = opts.get('stop', 6)

    def launch(name):
        launches.append('; @launch kernel=%s grid=(256,1,1) block=(256,1,1) lds=%d' % (name, MAIN_LDS))
        descs.append(kernel_desc(name, 512, 256))
    ph = 0
    for layer in range(2):
        xin, xmid, xout = ('X0', 'X1', 'X2') if layer == 0 else ('X2', 'X3', None)
        hb = 'H1' if layer == 0 else 'H2'
        final = layer == 1
        ph += 1
        if ph <= stop:
            name = 'col%d_kernel' % layer
            prologue(A, name)
            A('s_cmp_ge_u32 s2, 160')
            A('s_cbranch_scc1 %s_exit' % name)
            col_load_w(A, M, C)
            col_tables(A, M, C)
            col_load_x(A, M, C, xin, 'SSQ0' if layer == 0 else 'SSQ2', ' sc1')
            col_body(A, M, C, xmid)
            epilogue(A, name)
            launch(name)
        ph += 1
        if ph <= stop:
            name = 'ga%d_kernel' % layer
            prologue(A, name)
            g1_setup(A, M)
            g1_addr(A, M, G, hb)
            g1_load_x(A, M, G, xmid)
            g1_bias_loads(A, M, G)
            drain(g1_weight_loads(A, M, G))
            g1_stage_x(A, M, G)
            g1_body(A, M, G, {})
            epilogue(A, name)
            launch(name)
        ph += 1
        if ph <= stop:
            name = 'gb%d_kernel' % layer
            prologue(A, name)
            g1_addr(A, M, G, hb)
            g1_load_x(A, M, G, xmid)
            g1_stage_x(A, M, G)
            if final:
                G2 = G2Regs(4, [84 + 41 + 3, 84 + 41 + 3 + 16], wf, None, 84)
                G2.QF = [256 + 4 * i for i in range(25)]
                wl, ql = g2_weight_loads(A, M, G2, True)
                g2_bias_loads(A, M, G2, True)
                drain(ql)
                g2_init(A, M, G2, True)
                drain(wl)
                G2.RING = [128 + 16 * i for i in range(6)]
            else:
                G2 = G2Regs(4, [128 + 16 * i for i in range(6)], wf, None, 84)
                wl, ql = g2_weight_loads(A, M, G2, False)
                g2_bias_loads(A, M, G2, False)
                drain(wl)
                g2_init(A, M, G2, False)
            assert G2.end <= 128
            g2_main(A, M, G2)
            g2_finish(A, M, G2, final, xout)
            epilogue(A, name)
            launch(name)


def emit(A, launches, descs, opts):
    if opts.get('multi', True):
        emit_multi(A, launches, descs, opts)
```

```python
from common import *
from k1 import mfma16, cvt

XT = 0
RED = 81920
SQP = RED + 61440
MAIN_LDS = SQP + 1024
KG = 2.0 * (2.0 / 3.141592653589793) ** 0.5 * 1.4426950408889634

WA = [256 + 4 * i for i in range(40)]
WB_ = [256 + 160 + 4 * i for i in range(24)] + [192 + 4 * i for i in range(16)]


def mfma32(A, d, x, y, c):
    A('v_mfma_f32_32x32x16_bf16 %s, %s, %s, %s' % (r(d, 16), r(x, 4), r(y, 4), '0' if c is None else r(c, 16)))


class G1Regs:
    def __init__(self, base):
        R = Regs(base)
        self.ACC = R(32, 4)
        self.BR = R(32, 4)
        self.BIAS = R(16, 4)
        self.T = R(8, 2)
        self.O = R(8, 4)
        self.RHO = R(2)
        self.VXR, self.VH, self.VXW, self.SS0, self.SS1 = [R() for _ in range(5)]
        self.ST = R(80, 4)
        self.end = R.n


def g1_setup(A, M):
    A('s_mul_i32 s%d, s%d, 7' % (M.S_PA, M.S_N))
    A('s_cmp_eq_u32 s%d, 7' % M.S_N)
    A('s_cselect_b32 s%d, 48, s%d' % (M.S_PA, M.S_PA))
    A('s_add_u32 s%d, s%d, s%d' % (M.S_PA, M.S_PA, M.S_WV))
    A('s_cmp_lt_u32 s%d, 6' % M.S_N)
    A('s_cselect_b32 s%d, 3, 2' % M.S_HASB)
    A('s_cmp_lt_u32 s%d, s%d' % (M.S_WV, M.S_HASB))
    A('s_cselect_b32 s%d, 1, 0' % M.S_HASB)


def g1_weight_loads(A, M, G):
    out = []
    def pre():
        A('s_mul_i32 s%d, s%d, 40960' % (M.S_W, M.S_PA))
        A('s_add_u32 s%d, s%d, 0x%x' % (M.S_W, M.S_W, OFF['W1F']))
    out.append(pre)
    for tile, homes in ((0, WA), (1, WB_)):
        for i in range(40):
            def f(i=i, tile=tile, homes=homes):
                if tile == 1 and i == 0:
                    A('s_add_u32 s%d, s%d, %d' % (M.S_W, M.S_W, 3 * 40960))
                    A('s_cmp_eq_u32 s%d, 0' % M.S_HASB)
                    A('s_cselect_b32 s%d, 0x%x, 0' % (M.S_W2, OOB))
                    A('v_or_b32 v%d, s%d, v%d' % (M.VM, M.S_W2, M.VL16))
                A('buffer_load_dwordx4 %s, v%d, %s, s%d offen offset:%d' % (r(homes[i], 4), M.VM if tile else M.VL16, M.WS, M.S_W, (i & 3) * 1024))
                if (i & 3) == 3:
                    A('s_add_u32 s%d, s%d, 4096' % (M.S_W, M.S_W))
            out.append(f)
    return out


def g1_bias_loads(A, M, G):
    T = G.T
    A('v_lshrrev_b32 v%d, 5, v%d' % (T, M.LANE))
    A('v_lshlrev_b32 v%d, 4, v%d' % (T, T))
    A('s_lshl_b32 s%d, s%d, 6' % (M.S_A, M.S_PA))
    A('v_add_u32 v%d, s%d, v%d' % (T, M.S_A, T))
    for tile in range(2):
        for jj in range(2):
            A('buffer_load_dwordx4 %s, v%d, %s, 0 offen offset:%d' % (v(G.BIAS + 8 * tile + 4 * jj, 4), T, M.B1, 256 * tile + 32 * jj))


def g1_addr(A, M, G, hbuf):
    T = G.T
    A('v_and_b32 v%d, 31, v0' % T)
    A('v_lshlrev_b32 v%d, 4, v%d' % (T, T))
    A('v_lshrrev_b32 v%d, 5, v0' % (T + 1))
    A('v_lshl_add_u32 v%d, v%d, 15, v%d' % (G.VH, T + 1, T))
    A('v_lshl_add_u32 v%d, v%d, 10, v%d' % (G.VXW, T + 1, T))
    A('v_lshrrev_b32 v%d, 5, v%d' % (T + 1, M.LANE))
    A('v_lshl_add_u32 v%d, v%d, 10, v%d' % (G.VXR, T + 1, T))
    A('s_mul_i32 s%d, s%d, %d' % (M.S_H, M.S_T, 216 * 1024))
    A('s_add_u32 s%d, s%d, 0x%x' % (M.S_H, M.S_H, OFF[hbuf]))


def g1_load_x(A, M, G, xin):
    A('s_lshl_b32 s%d, s%d, 9' % (M.S_A, M.S_T))
    A('s_add_u32 s%d, s%d, 0x%x' % (M.S_A, M.S_A, OFF[xin]))
    for it in range(10):
        A('s_add_u32 s%d, s%d, 16384' % (M.S_B, M.S_A))
        A('buffer_load_dwordx4 %s, v%d, %s, s%d offen sc1' % (v(G.ST + 8 * it, 4), G.VH, M.WS, M.S_A))
        A('buffer_load_dwordx4 %s, v%d, %s, s%d offen sc1' % (v(G.ST + 8 * it + 4, 4), G.VH, M.WS, M.S_B))
        if it < 9:
            A('s_add_u32 s%d, s%d, %d' % (M.S_A, M.S_A, 8 * 32768))


def g1_stage_x(A, M, G):
    T = G.T
    A('v_cmp_gt_u32 vcc, 32, v0')
    A('v_mov_b32 v%d, 0xffff0000' % T)
    A('v_cndmask_b32 v%d, -1, v%d, vcc' % (T, T))
    A('v_add_u32 v%d, %d, v%d' % (T + 3, 5 * 8192, G.VXW))
    for it in range(10):
        s0 = G.ST + 8 * it
        A('v_swap_b32 v%d, v%d' % (s0 + 2, s0 + 4))
        A('v_swap_b32 v%d, v%d' % (s0 + 3, s0 + 5))
        ad = G.VXW if it < 5 else T + 3
        for par in range(2):
            A('ds_write_b128 v%d, %s offset:%d' % (ad, v(s0 + 4 * par, 4), XT + (it % 5) * 8192 + 512 * par))
        for par in range(2):
            acc = G.SS0 + par
            for i in range(4):
                x = s0 + 4 * par + i
                if it == 0 and i == 0:
                    A('v_and_b32 v%d, v%d, v%d' % (T + 1 + par, T, x))
                    A('v_dot2_f32_bf16 v%d, v%d, v%d, 0' % (acc, T + 1 + par, T + 1 + par))
                else:
                    A('v_dot2_f32_bf16 v%d, v%d, v%d, v%d' % (acc, x, x, acc))
    A('v_permlane32_swap_b32 v%d, v%d' % (G.SS0, G.SS1))
    A('v_add_f32 v%d, v%d, v%d' % (G.SS0, G.SS0, G.SS1))
    A('s_lshl_b32 s%d, s%d, 2' % (M.S_A, M.S_WV))
    A('v_lshlrev_b32 v%d, 4, v%d' % (T, M.LANE))
    A('v_add_u32 v%d, s%d, v%d' % (T, M.S_A, T))
    A('v_add_u32 v%d, %d, v%d' % (T, SQP, T))
    A('ds_write_b32 v%d, v%d' % (T, G.SS0))
    A.wait(lg=0)
    A('s_barrier')


def g1_rho(A, M, G):
    T, O = G.T, G.O
    L = []
    L.append(lambda: A('v_and_b32 v%d, 31, v%d' % (T, M.LANE)))
    L.append(lambda: A('v_lshlrev_b32 v%d, 4, v%d' % (T, T)))
    L.append(lambda: A('v_add_u32 v%d, %d, v%d' % (T, SQP, T)))
    for par in range(2):
        L.append(lambda par=par: A('ds_read_b128 %s, v%d offset:%d' % (v(O + 4 * par, 4), T, 512 * par)))
    L.append(lambda: A('v_mov_b32 v%d, v%d' % (G.VH, G.VXR)))
    L.append(lambda: A('v_mov_b32 v%d, %s' % (T + 1, fl(1e-5))))
    L.append(None)
    L.append(None)
    for par in range(2):
        o = O + 4 * par
        for txt in ('v_add_f32 v%d, v%d, v%d' % (o, o, o + 1),
                    'v_add_f32 v%d, v%d, v%d' % (o + 2, o + 2, o + 3),
                    'v_add_f32 v%d, v%d, v%d' % (o, o, o + 2),
                    'v_mul_f32 v%d, %s, v%d' % (o, fl(1.0 / 640), o),
                    'v_add_f32 v%d, v%d, v%d' % (o + 1, o, T + 1),
                    'v_rsq_f32 v%d, v%d' % (o + 1, o + 1),
                    'v_mul_f32 v%d, v%d, v%d' % (o, o, o + 1),
                    'v_fma_f32 v%d, v%d, v%d, v%d' % (o, o, o + 1, T + 1),
                    'v_rsq_f32 v%d, v%d' % (o, o),
                    'v_mul_f32 v%d, v%d, v%d' % (G.RHO + par, o, o + 1)):
            L.append(lambda txt=txt: A(txt))
    return L


def g1_epilogue(A, M, G, unit):
    tile, half = unit >> 1, unit & 1
    acc = G.ACC + 16 * (unit & 1)
    T, O = G.T, G.O
    L = []
    add = lambda txt: L.append(lambda txt=txt: A(txt))
    for pr in range(8):
        bsrc = G.BIAS + 8 * tile + pr
        for h in range(2):
            x, tt = acc + 2 * pr + h, T + 4 * h
            add(('v_and_b32 v%d, 0xffff0000, v%d' if h else 'v_lshlrev_b32 v%d, 16, v%d') % (tt, bsrc))
            add('v_fma_f32 v%d, v%d, v%d, v%d' % (x, x, G.RHO + half, tt))
            add('v_mul_f32 v%d, v%d, v%d' % (tt, x, x))
            add('v_fmaak_f32 v%d, v%d, v%d, %s' % (tt, G.SS0, tt, fl(-KG)))
            add('v_mul_f32 v%d, v%d, v%d' % (tt, tt, x))
            add('v_exp_f32 v%d, v%d' % (tt, tt))
        for h in range(2):
            tt = T + 4 * h
            add('v_add_f32 v%d, 1.0, v%d' % (tt, tt))
            add('v_rcp_f32 v%d, v%d' % (tt, tt))
        for h in range(2):
            x, tt = acc + 2 * pr + h, T + 4 * h
            add('v_mul_f32 v%d, v%d, v%d' % (x, x, tt))
        add('v_cvt_pk_bf16_f32 v%d, v%d, v%d' % (O + pr, acc + 2 * pr, acc + 2 * pr + 1))
        if pr & 3 == 3:
            jj = pr >> 2
            add('buffer_store_dwordx4 %s, v%d, %s, s%d offen offset:%d sc1' % (v(O + 4 * jj, 4), G.VH, M.WS, M.S_HT + tile, 2048 * jj + 512 * half))
    return L


def drain(L, n=None):
    k = 0
    while L and (n is None or k < n):
        f = L.pop(0)
        if f is not None:
            f()
        k += 1


def g1_units(A, M, G, units, fill, extra):
    DEPTH = 6
    seq = [(u, ks) for u in units for ks in range(40)]

    def rd(i):
        u, ks = seq[i]
        off = ks * 2048 + 512 * (u & 1)
        ad = G.VXR if off < 65536 else G.VXW
        A('ds_read_b128 %s, v%d offset:%d' % (v(G.BR + 4 * (i % 8), 4), ad, XT + (off if off < 65536 else off - 40960)))
    for i in range(DEPTH):
        rd(i)
    for i, (u, ks) in enumerate(seq):
        if ks == 0 and i:
            drain(fill)
            fill = g1_epilogue(A, M, G, seq[i - 1][0])
        homes = WB_ if u >> 1 else WA
        acc = G.ACC + 16 * (u & 1)
        mfma32(A, acc, homes[ks], G.BR + 4 * (i % 8), None if ks == 0 else acc)
        if i + DEPTH < len(seq):
            rd(i + DEPTH)
        if ks >= 1:
            drain(fill, 4)
        for f in extra.get(u, {}).get(ks, []):
            f()
    drain(fill)
    return g1_epilogue(A, M, G, seq[-1][0])


def g1_body(A, M, G, pf):
    A('v_mov_b32 v%d, %s' % (G.SS0, fl(-KG * 0.044715)))
    A('s_lshl_b32 s%d, s%d, 12' % (M.S_HT, M.S_PA))
    A('s_add_u32 s%d, s%d, s%d' % (M.S_HT, M.S_HT, M.S_H))
    A('s_add_u32 s%d, s%d, 16384' % (M.S_HT + 1, M.S_HT))
    A('v_add_u32 v%d, 40960, v%d' % (G.VXW, G.VXR))
    lb, le = A.newlabel('G1_one'), A.newlabel('G1_end')
    A('s_cmp_eq_u32 s%d, 0' % M.S_HASB)
    A('s_cbranch_scc1 %s' % lb)
    st = A.save()
    drain(g1_units(A, M, G, [0, 1, 2, 3], g1_rho(A, M, G), pf))
    A('s_branch %s' % le)
    st2 = A.save()
    A.label(lb)
    A.restore(st)
    drain(g1_units(A, M, G, [0, 1], g1_rho(A, M, G), pf))
    for u in (2, 3):
        for ks in range(40):
            for f in pf.get(u, {}).get(ks, []):
                f()
    A.label(le)
    A.merge(st2, A.save())


class G2Regs:
    def __init__(self, acc, ring, wf, qf, misc):
        self.ACC = acc
        self.RING = ring
        self.WF = wf
        self.QF = qf
        R = Regs(misc)
        self.T = R(16, 4)
        self.BI = R(20, 4)
        self.VL, self.VHR, self.VQ, self.VO, self.VS = [R() for _ in range(5)]
        self.end = R.n


def g2_weight_loads(A, M, G2, final):
    out = []
    def pre():
        A('s_mul_i32 s%d, s%d, %d' % (M.S_W, M.S_N, 54 * 5120))
        A('s_mul_i32 s%d, s%d, %d' % (M.S_C, M.S_WV, 14 * 5120))
        A('s_add_u32 s%d, s%d, s%d' % (M.S_W, M.S_W, M.S_C))
        A('s_add_u32 s%d, s%d, 0x%x' % (M.S_W, M.S_W, OFF['W2T' if final else 'W2F']))
    def preq():
        A('s_lshl_b32 s%d, s%d, 2' % (M.S_W2, M.S_N))
        A('s_add_u32 s%d, s%d, s%d' % (M.S_W2, M.S_W2, M.S_WV))
        A('s_mul_i32 s%d, s%d, %d' % (M.S_W2, M.S_W2, 5 * 5120))
        A('s_add_u32 s%d, s%d, 0x%x' % (M.S_W2, M.S_W2, OFF['QF']))
    for i in range(70):
        def f(i=i):
            if i == 0:
                pre()
            if i == 60:
                A('s_cmp_eq_u32 s%d, 3' % M.S_WV)
                A('s_cselect_b32 s%d, 0x%x, 0' % (M.S_C, OOB))
                A('v_or_b32 v%d, s%d, v%d' % (M.VM, M.S_C, M.VL16))
            A('buffer_load_dwordx4 %s, v%d, %s, s%d offen offset:%d' % (r(G2.WF[i], 4), M.VM if i >= 60 else M.VL16, M.WS, M.S_W, (i & 3) * 1024))
            if (i & 3) == 3:
                A('s_add_u32 s%d, s%d, 4096' % (M.S_W, M.S_W))
        out.append(f)
    outq = []
    if final:
        for i in range(25):
            def f(i=i):
                if i == 0:
                    preq()
                A('buffer_load_dwordx4 %s, v%d, %s, s%d offen offset:%d' % (r(G2.QF[i], 4), M.VL16, M.WS, M.S_W2, (i & 3) * 1024))
                if (i & 3) == 3:
                    A('s_add_u32 s%d, s%d, 4096' % (M.S_W2, M.S_W2))
            outq.append(f)
    return out, outq


def g2_bias_loads(A, M, G2, final):
    T = G2.T
    A('v_lshrrev_b32 v%d, 4, v%d' % (T, M.LANE))
    if final:
        A('v_lshlrev_b32 v%d, 4, v%d' % (T + 1, T))
        A('v_lshlrev_b32 v%d, 3, v%d' % (T, T))
        A('s_mul_i32 s%d, s%d, 160' % (M.S_A, M.S_N))
        for u in range(2):
            A('buffer_load_dwordx4 %s, v%d, %s, s%d offen offset:%d' % (v(G2.BI + 4 * u, 4), T + 1, M.B2, M.S_A, 64 * u))
        A('buffer_load_dwordx2 %s, v%d, %s, s%d offen offset:128' % (v(G2.BI + 8, 2), T, M.B2, M.S_A))
    else:
        A('v_lshlrev_b32 v%d, 4, v%d' % (T, T))
        A('s_mul_i32 s%d, s%d, 320' % (M.S_A, M.S_N))
        A('s_add_u32 s%d, s%d, 0x%x' % (M.S_A, M.S_A, OFF['B2F']))
        for ct in range(5):
            A('buffer_load_dwordx4 %s, v%d, %s, s%d offen offset:%d' % (v(G2.BI + 4 * ct, 4), T, M.WS, M.S_A, 64 * ct))


def g2_init(A, M, G2, final):
    T = G2.T
    tile = lambda ct, rt: G2.ACC + 4 * (4 * ct + rt)
    A('v_lshrrev_b32 v%d, 4, v%d' % (T, M.LANE))
    A('v_and_b32 v%d, 15, v%d' % (T + 1, M.LANE))
    A('v_lshlrev_b32 v%d, 4, v%d' % (T + 2, T + 1))
    A('v_lshl_add_u32 v%d, v%d, 10, v%d' % (G2.VHR, T, T + 2))
    A('v_add_u32 v%d, %d, v%d' % (G2.VL, RED, M.VL16))
    lz, le = A.newlabel('G2_zero'), A.newlabel('G2_init')
    A('s_cmp_lg_u32 s%d, 3' % M.S_WV)
    A('s_cbranch_scc1 %s' % lz)
    st = A.save()
    if final:
        for ct in range(5):
            for t in range(4):
                src = G2.BI + 2 * ct + (t >> 1)
                A(('v_and_b32 v%d, 0xffff0000, v%d' if t & 1 else 'v_lshlrev_b32 v%d, 16, v%d') % (tile(ct, 0) + t, src))
                for rt in range(1, 4):
                    A('v_mov_b32 v%d, v%d' % (tile(ct, rt) + t, tile(ct, 0) + t))
    else:
        A('v_lshrrev_b32 v%d, 1, v%d' % (T + 3, T))
        A('v_lshl_add_u32 v%d, v%d, 10, v%d' % (T + 3, T + 3, T + 2))
        A('v_and_b32 v%d, 1, v%d' % (T, T))
        A('v_lshl_add_u32 v%d, v%d, 3, v%d' % (T + 3, T, T + 3))
        A('s_mul_i32 s%d, s%d, 10240' % (M.S_A, M.S_N))
        A('v_add_u32 v%d, s%d, v%d' % (T + 3, M.S_A, T + 3))
        for ct in range(5):
            for rt in range(4):
                A('ds_read_b64 %s, v%d offset:%d' % (v(tile(ct, rt) + 2, 2), T + 3, XT + 2048 * ct + 256 * rt))
        for ct in range(5):
            for rt in range(4):
                d = tile(ct, rt)
                A('v_lshlrev_b32 v%d, 16, v%d' % (d, d + 2))
                A('v_and_b32 v%d, 0xffff0000, v%d' % (d + 1, d + 2))
                A('v_lshlrev_b32 v%d, 16, v%d' % (d + 2, d + 3))
                A('v_and_b32 v%d, 0xffff0000, v%d' % (d + 3, d + 3))
                for h in range(2):
                    A('v_pk_add_f32 %s, %s, %s' % (v(d + 2 * h, 2), v(d + 2 * h, 2), v(G2.BI + 4 * ct + 2 * h, 2)))
    A('s_branch %s' % le)
    st2 = A.save()
    A.label(lz)
    A.restore(st)
    for i in range(40):
        A('v_mov_b64 %s, 0' % v(G2.ACC + 2 * i, 2))
    A.label(le)
    A.merge(st2, A.save())
    if final:
        A('s_mul_i32 s%d, s%d, 20480' % (M.S_A, M.S_WV))
        A('v_add_u32 v%d, s%d, v%d' % (G2.VQ, M.S_A, G2.VHR))
        for ks in range(5):
            rg = G2.RING[ks % 2]
            for rt in range(4):
                A('ds_read_b128 %s, v%d offset:%d' % (r(rg + 4 * rt, 4), G2.VQ, XT + 4096 * ks + 256 * rt))
            for ct in range(5):
                for rt in range(4):
                    mfma16(A, tile(ct, rt), G2.QF[5 * ks + ct], rg + 4 * rt, tile(ct, rt))


def g2_main(A, M, G2):
    tile = lambda ct, rt: G2.ACC + 4 * (4 * ct + rt)
    A('s_mul_i32 s%d, s%d, %d' % (M.S_A, M.S_WV, 14 * 4096))
    A('s_add_u32 s%d, s%d, s%d' % (M.S_A, M.S_A, M.S_H))
    nr = len(G2.RING)

    def ld(ks):
        if ks == 12:
            A('s_cmp_eq_u32 s%d, 3' % M.S_WV)
            A('s_cselect_b32 s%d, 0x%x, 0' % (M.S_C, OOB))
            A('v_or_b32 v%d, s%d, v%d' % (G2.VHR, M.S_C, G2.VHR))
        for rt in range(4):
            A('buffer_load_dwordx4 %s, v%d, %s, s%d offen offset:%d sc1' % (r(G2.RING[ks % nr] + 4 * rt, 4), G2.VHR, M.WS, M.S_A, 256 * rt))
        A('s_add_u32 s%d, s%d, 4096' % (M.S_A, M.S_A))
    for ks in range(min(nr, 14)):
        ld(ks)
    for ks in range(14):
        for rt in range(4):
            for ct in range(5):
                mfma16(A, tile(ct, rt), G2.WF[5 * ks + ct], G2.RING[ks % nr] + 4 * rt, tile(ct, rt))
        if ks + nr < 14:
            ld(ks + nr)


def g2_finish(A, M, G2, final, xout):
    T = G2.T
    tile = lambda ct, rt: G2.ACC + 4 * (4 * ct + rt)
    owner = (lambda ct, rt: rt) if final else (lambda ct, rt: (rt & 1) + (2 if ct >= 3 else 0))
    slot = lambda ct, rt, src: ((4 * ct + rt) * 3 + (src - owner(ct, rt) - 1) % 4) * 1024
    A('v_lshrrev_b32 v%d, 4, v%d' % (T, M.LANE))
    A('v_and_b32 v%d, 15, v%d' % (T + 1, M.LANE))
    if final:
        A('v_mul_u32_u24 v%d, %d, v%d' % (G2.VO, 64 * 1280, T + 1))
        A('v_lshl_add_u32 v%d, v%d, 3, v%d' % (G2.VS, T, G2.VO))
        A('v_lshl_add_u32 v%d, v%d, 4, v%d' % (G2.VO, T, G2.VO))
        A('s_and_b32 s%d, s%d, 1' % (M.S_A, M.S_WV))
        A('s_lshl_b32 s%d, s%d, 5' % (M.S_A, M.S_A))
        A('s_lshr_b32 s%d, s%d, 1' % (M.S_B, M.S_WV))
        A('s_add_u32 s%d, s%d, s%d' % (M.S_A, M.S_A, M.S_B))
        A('s_lshl_b32 s%d, s%d, 5' % (M.S_A, M.S_A))
        A('s_add_u32 s%d, s%d, s%d' % (M.S_A, M.S_A, M.S_T))
        A('s_mul_i32 s%d, s%d, 1280' % (M.S_A, M.S_A))
        A('s_mul_i32 s%d, s%d, 160' % (M.S_B, M.S_N))
        A('s_add_u32 s%d, s%d, s%d' % (M.S_A, M.S_A, M.S_B))
    else:
        A('v_lshlrev_b32 v%d, 4, v%d' % (G2.VO, T + 1))
        A('v_lshl_add_u32 v%d, v%d, 14, v%d' % (G2.VO, T, G2.VO))
        A('s_mul_i32 s%d, s%d, %d' % (M.S_A, M.S_N, 20 * 16384))
        A('s_lshl_b32 s%d, s%d, 9' % (M.S_B, M.S_T))
        A('s_add_u32 s%d, s%d, s%d' % (M.S_A, M.S_A, M.S_B))
        A('s_add_u32 s%d, s%d, 0x%x' % (M.S_A, M.S_A, OFF[xout]))
        A('v_and_b32 v%d, 7, v%d' % (T + 2, M.LANE))
        A('v_lshlrev_b32 v%d, 5, v%d' % (G2.VS, T + 2))
        A('v_bfe_u32 v%d, v%d, 3, 1' % (T + 2, M.LANE))
        A('v_lshl_add_u32 v%d, v%d, 3, v%d' % (G2.VS, T + 2, G2.VS))
        A('v_lshl_add_u32 v%d, v%d, 2, v%d' % (G2.VS, T, G2.VS))
        A('v_mov_b32 v%d, 0x%x' % (T + 2, OOB))
        A('v_cmp_gt_u32 vcc, 32, v%d' % M.LANE)
        A('v_cndmask_b32 v%d, v%d, v%d, vcc' % (G2.VS, T + 2, G2.VS))
        A('s_lshl_b32 s%d, s%d, 8' % (M.S_B, M.S_T))
        A('s_add_u32 s%d, s%d, 0x%x' % (M.S_B, M.S_B, OFF['SSQ2']))
        A('s_cmp_eq_u32 s%d, 0' % M.S_N)
        A('s_cselect_b32 s%d, 16, 0' % M.S_W2)
        A('v_cmp_gt_u32 vcc, s%d, v%d' % (M.S_W2, M.LANE))
        A('v_mov_b32 v%d, 0xffff0000' % (T + 2))
        A('v_cndmask_b32 v%d, -1, v%d, vcc' % (G2.VQ, T + 2))
    labs = [A.newlabel('G2_red') for _ in range(4)]
    le = A.newlabel('G2_done')
    for w in range(1, 4):
        A('s_cmp_eq_u32 s%d, %d' % (M.S_WV, w))
        A('s_cbranch_scc1 %s' % labs[w])
    st = A.save()
    ends = []
    for w in range(4):
        A.label(labs[w])
        A.restore(st)
        for rt in range(4):
            for ct in range(5):
                if owner(ct, rt) != w:
                    A('ds_write_b128 v%d, %s offset:%d' % (G2.VL, v(tile(ct, rt), 4), slot(ct, rt, w)))
        A.wait(lg=0)
        A('s_barrier')
        own = [(ct, rt) for ct in range(5) for rt in range(4) if owner(ct, rt) == w]
        free = [tile(ct, rt) for ct in range(5) for rt in range(4) if owner(ct, rt) != w] + [T + 4 * i for i in range(4)]
        k = 0
        land = {}
        for (ct, rt) in own:
            for j in range(3):
                land[(ct, rt, j)] = free[k]
                A('ds_read_b128 %s, v%d offset:%d' % (v(free[k], 4), G2.VL, ((4 * ct + rt) * 3 + j) * 1024))
                k += 1
        for (ct, rt) in own:
            d = tile(ct, rt)
            p0, p1, p2 = [land[(ct, rt, j)] for j in range(3)]
            for h in range(2):
                A('v_pk_add_f32 %s, %s, %s' % (v(d + 2 * h, 2), v(d + 2 * h, 2), v(p0 + 2 * h, 2)))
                A('v_pk_add_f32 %s, %s, %s' % (v(p1 + 2 * h, 2), v(p1 + 2 * h, 2), v(p2 + 2 * h, 2)))
            for h in range(2):
                A('v_pk_add_f32 %s, %s, %s' % (v(d + 2 * h, 2), v(d + 2 * h, 2), v(p1 + 2 * h, 2)))
            if final:
                o = G2.BI + 2 * ct
                cvt(A, o, d, d + 1)
                cvt(A, o + 1, d + 2, d + 3)
                if ct in (1, 3):
                    A('buffer_store_dwordx4 %s, v%d, %s, s%d offen offset:%d' % (v(o - 2, 4), G2.VO, M.OUT, M.S_A, 32 * (ct - 1)))
                elif ct == 4:
                    A('buffer_store_dwordx2 %s, v%d, %s, s%d offen offset:128' % (v(o, 2), G2.VS, M.OUT, M.S_A))
            else:
                o = G2.BI + 4 * ct + 2 * (rt >> 1)
                cvt(A, o, d, d + 1)
                cvt(A, o + 1, d + 2, d + 3)
                if rt >= 2:
                    A('s_add_u32 s%d, s%d, %d' % (M.S_W, M.S_A, ct * 65536))
                    A('buffer_store_dwordx4 %s, v%d, %s, s%d offen offset:%d sc1' % (v(o - 2, 4), G2.VO, M.WS, M.S_W, 256 * (rt & 1)))
        if not final:
            cts = sorted(set(ct for ct, rt in own))
            q0, q1 = free[0], free[0] + 1
            for par, q in ((0, q0), (1, q1)):
                first = True
                for ct in cts:
                    for h in range(2):
                        x = G2.BI + 4 * ct + 2 * par + h
                        if ct == 0 and h == 0:
                            A('v_and_b32 v%d, v%d, v%d' % (free[0] + 2, G2.VQ, x))
                            x = free[0] + 2
                        A('v_dot2_f32_bf16 v%d, v%d, v%d, %s' % (q, x, x, '0' if first else 'v%d' % q))
                        first = False
            A('v_permlane16_swap_b32 v%d, v%d' % (q0, q1))
            A('v_add_f32 v%d, v%d, v%d' % (q0, q0, q1))
            A('v_mov_b32 v%d, v%d' % (q1, q0))
            A('v_permlane32_swap_b32 v%d, v%d' % (q0, q1))
            A('v_add_f32 v%d, v%d, v%d' % (q0, q0, q1))
            A('buffer_atomic_add_f32 v%d, v%d, %s, s%d offen offset:%d' % (q0, G2.VS, M.WS, M.S_B, 16 * (w & 1)))
        if w < 3:
            A('s_branch %s' % le)
        ends.append(A.save())
    A.label(le)
    A.merge(*ends)
```

```python
import sys
from common import *
import k1

NAME = 'interleave_layers__spectral_gfnet__mixer_channel_mlp__prompt'


def build(opts):
    A = Asm()
    launches, descs = [], []
    nv = k1.emit_k1(A, 'prep_kernel')
    launches.append('; @launch kernel=prep_kernel grid=(%d,1,1) block=(256,1,1) lds=%d' % (k1.K1_GRID, k1.K1_LDS))
    descs.append(kernel_desc('prep_kernel', nv, nv))
    if opts.get('main', True):
        import mainz
        mainz.emit(A, launches, descs, opts)
    head = ['; GFNet spectral filter + channel MLP, two interleaved layers, residual stream kept in the row-spectrum basis.']
    head += launches
    head += ['.amdgcn_target "amdgcn-amd-amdhsa--gfx950"', '.text']
    return '\n'.join(head) + '\n' + A.text() + '.section .rodata,"a"\n.p2align 6\n' + '.p2align 6\n'.join(descs)


if __name__ == '__main__':
    opts = {}
    out = 'cdna_kernels/%s.s' % NAME
    for x in sys.argv[1:]:
        k, _, val = x.partition('=')
        if k == 'out':
            out = val
        else:
            opts[k] = eval(val)
    t = build(opts)
    open(out, 'w').write(t)
    print('wrote', out, len(t), 'bytes')
```

```python
import re

REG_RE = re.compile(r'\b([vas])\[(\d+):(\d+)\]|\b([vas])(\d+)\b|\b(vcc|exec|m0|vcc_lo|vcc_hi|exec_lo|exec_hi|scc)\b')
TRANS = ('v_exp_f32', 'v_log_f32', 'v_rcp_f32', 'v_rsq_f32', 'v_sqrt_f32', 'v_sin_f32', 'v_cos_f32')


def regs_of(text):
    out = []
    for m in REG_RE.finditer(text):
        if m.group(1):
            out += [(m.group(1), i) for i in range(int(m.group(2)), int(m.group(3)) + 1)]
        elif m.group(4):
            out.append((m.group(4), int(m.group(5))))
        else:
            n = m.group(6)
            out.append(('x', n.split('_')[0]))
    return out


def split_ops(s):
    ops, depth, cur = [], 0, ''
    for ch in s:
        if ch == '[':
            depth += 1
        elif ch == ']':
            depth -= 1
        if ch == ',' and depth == 0:
            ops.append(cur.strip())
            cur = ''
        else:
            cur += ch
    if cur.strip():
        ops.append(cur.strip())
    return ops


class Ins:
    __slots__ = ('text', 'op', 'kind', 'wr', 'rd', 'srcc', 'passes', 'data', 'dpp', 'states')

    def __init__(self, text):
        self.text = text
        parts = text.split(None, 1)
        self.op = op = parts[0]
        rest = parts[1] if len(parts) > 1 else ''
        rest_ops = re.split(r'\s+(?=offen|offset|bitop3|op_sel|neg_|sc0|sc1|nt\b|row_|quad_perm|bank_mask|bound_ctrl|clamp|mul:|div:|cbsz|blgp|abid|lds\b|idxen|dst_sel|src0_sel|src1_sel|dst_unused)', rest, maxsplit=1)[0]
        ops = split_ops(rest_ops)
        self.wr, self.rd, self.srcc, self.data = [], [], [], []
        self.passes = 0
        self.dpp = ('_dpp' in op) or ('row_' in rest) or ('quad_perm' in rest)
        self.states = 1
        R = lambda l: [r for o in l for r in regs_of(o)]
        if op.startswith('v_mfma'):
            self.kind = 'mfma'
            self.passes = 8 if '32x32' in op else 4
            self.wr = R(ops[:1]); self.rd = R(ops[1:3]); self.srcc = R(ops[3:4])
        elif op.startswith('v_cmp'):
            self.kind = 'valu'
            self.wr = R(ops[:1]); self.rd = R(ops[1:])
            if op.startswith('v_cmpx'):
                self.wr.append(('x', 'exec'))
        elif op.startswith('v_swap') or op.startswith('v_permlane'):
            self.kind = 'valu'
            self.wr = R(ops[:2]); self.rd = R(ops[:2])
        elif op.startswith('v_'):
            self.kind = 'valu'
            n = 2 if ('_co_' in op and len(ops) >= 4) else 1
            self.wr = R(ops[:n]); self.rd = R(ops[n:])
            base = re.sub(r'_(e32|e64|dpp|sdwa)$', '', op)
            if base in ('v_fmac_f32', 'v_dot2c_f32_bf16', 'v_mac_f32', 'v_pk_fmac_f16') or self.dpp or 'writelane' in op:
                self.rd += R(ops[:1])
            if base.startswith('v_cndmask') and len(ops) == 3:
                self.rd.append(('x', 'vcc'))
        elif op.startswith('buffer_load') or op.startswith('global_load'):
            self.kind = 'vload'
            if ' lds' in text or '_lds_' in op:
                self.rd = R(ops) + [('x', 'm0')]
            else:
                self.wr = R(ops[:1]); self.rd = R(ops[1:])
                if 'd16' in op:
                    self.rd += R(ops[:1])
        elif op.startswith('buffer_store') or op.startswith('buffer_atomic'):
            self.kind = 'vstore'
            self.rd = R(ops); self.data = R(ops[:1])
        elif op.startswith('global_store') or op.startswith('global_atomic'):
            self.kind = 'vstore'
            self.rd = R(ops); self.data = R(ops[1:2])
        elif op.startswith('ds_read') or op.startswith('ds_bpermute') or op.startswith('ds_swizzle') or op.startswith('ds_permute'):
            self.kind = 'dsr'
            self.wr = R(ops[:1]); self.rd = R(ops[1:])
            if 'd16' in op:
                self.rd += R(ops[:1])
        elif op.startswith('ds_'):
            self.kind = 'dsw'
            self.rd = R(ops)
            if 'addtid' in op:
                self.rd.append(('x', 'm0'))
        elif op.startswith('s_load') or op.startswith('s_memtime') or op.startswith('s_memrealtime'):
            self.kind = 'smem'
            self.wr = R(ops[:1]); self.rd = R(ops[1:])
        elif op == 's_nop':
            self.kind = 'nop'
            self.states = int(rest) + 1
        elif op in ('s_waitcnt', 's_barrier', 's_endpgm', 's_sleep', 's_setprio', 's_branch') or op.startswith('s_cbranch'):
            self.kind = 'ctl'
            if 'vcc' in op:
                self.rd = [('x', 'vcc')]
            if 'exec' in op:
                self.rd = [('x', 'exec')]
        elif op.startswith('s_cmp') or op.startswith('s_bitcmp'):
            self.kind = 'salu'
            self.rd = R(ops)
        elif op.startswith('s_'):
            self.kind = 'salu'
            self.wr = R(ops[:1]); self.rd = R(ops[1:])
            if 'saveexec' in op:
                self.wr.append(('x', 'exec')); self.rd.append(('x', 'exec'))
        else:
            raise ValueError('unknown instruction: ' + text)


class Asm:
    def __init__(self):
        self.lines = []
        self.hists = [[]]
        self.vm = []
        self.lg = []
        self.sm = set()
        self.nlabel = 0
        self.count = 0
        self.bg = []
        self.bg_every = 0
        self._bgc = 0
        self.deferred = []

    def raw(self, s):
        self.lines.append(s)

    def comment(self, s):
        self.lines.append('    ; ' + s)

    def label(self, name):
        self.lines.append(name + ':')

    def newlabel(self, p='L'):
        self.nlabel += 1
        return '%s_%d' % (p, self.nlabel)

    def reset(self):
        self.hists, self.vm, self.lg, self.sm = [[]], [], [], set()

    def save(self):
        return ([list(h) for h in self.hists], [set(x) for x in self.vm], [set(x) for x in self.lg], set(self.sm))

    def restore(self, st):
        self.hists = [list(h) for h in st[0]]
        self.vm = [set(x) for x in st[1]]
        self.lg = [set(x) for x in st[2]]
        self.sm = set(st[3])

    def merge(self, *sts):
        self.hists = [list(h) for st in sts for h in st[0]]

        def join(k):
            n = max(len(st[k]) for st in sts)
            pos = {}
            for st in sts:
                for i, x in enumerate(st[k]):
                    for q in x:
                        pos[q] = min(pos.get(q, n), len(st[k]) - 1 - i)
            out = [set() for _ in range(n)]
            for q, p_ in pos.items():
                out[n - 1 - p_].add(q)
            return out
        self.vm = join(1)
        self.lg = join(2)
        self.sm = set().union(*[st[3] for st in sts])

    def _emit(self, ins):
        self.lines.append('    ' + ins.text)
        for h in self.hists:
            h.append(ins)
            if len(h) > 24:
                h.pop(0)
        if len(self.hists) > 1 and all(h == self.hists[0] for h in self.hists):
            self.hists = self.hists[:1]
        self.count += 1

    def wait(self, vm=None, lg=None):
        parts = []
        if vm is not None:
            vm = min(vm, 63)
            if len(self.vm) > vm or vm == 0:
                parts.append('vmcnt(%d)' % vm)
                self.vm = self.vm[len(self.vm) - vm:] if vm else []
        if lg is not None:
            lg = min(lg, 15)
            if len(self.lg) > lg or lg == 0:
                parts.append('lgkmcnt(%d)' % lg)
                self.lg = self.lg[len(self.lg) - lg:] if lg else []
                if lg == 0:
                    self.sm = set()
        if parts:
            self._emit(Ins('s_waitcnt ' + ' '.join(parts)))

    def _auto_wait(self, ins):
        touched = set(ins.rd) | set(ins.wr) | set(ins.srcc)
        nv = nl = None
        for i in range(len(self.vm) - 1, -1, -1):
            if self.vm[i] & touched:
                nv = len(self.vm) - 1 - i
                break
        for i in range(len(self.lg) - 1, -1, -1):
            if self.lg[i] & touched:
                nl = len(self.lg) - 1 - i
                break
        if self.sm & touched or (self.sm and nl is not None):
            nl = 0
        if ins.kind == 'vload' and nv is not None:
            rdset = set(ins.rd)
            if not any(s & rdset for s in self.vm):
                nv = None
        if ins.kind == 'dsr' and nl is not None and not (self.sm & touched):
            rdset = set(ins.rd)
            if not any(s & rdset for s in self.lg):
                nl = None
        if nv is not None or nl is not None:
            self.wait(vm=nv, lg=nl)

    def _need(self, p, c):
        pw, cr, cw = set(p.wr), set(c.rd) | set(c.srcc), set(c.wr)
        vg = lambda s: {r for r in s if r[0] in 'va'}
        sg = lambda s: {r for r in s if r[0] == 's' or r == ('x', 'vcc')}
        n = 0
        if p.kind == 'mfma':
            big = {4: 8, 8: 12}[p.passes]
            if c.kind == 'mfma':
                if pw & set(c.rd):
                    n = max(n, big)
                if pw & set(c.srcc):
                    if not (p.wr == c.srcc and p.passes == c.passes):
                        n = max(n, big - 2)
                elif pw & cw:
                    n = max(n, big)
            elif c.kind in ('valu', 'vload', 'vstore', 'dsr', 'dsw') and pw & (cr | cw):
                n = max(n, big)
            if c.kind == 'valu' and set(p.srcc) & cw:
                n = max(n, {4: 3, 8: 7}[p.passes])
        if p.kind == 'valu':
            isdot = p.op.startswith('v_dot')
            if c.kind == 'mfma' and vg(pw) & cr:
                n = max(n, 3 if isdot else 2)
            if c.kind == 'mfma' and ('x', 'exec') in pw:
                n = max(n, 4)
            if isdot and pw & (cr | cw) and c.kind != 'salu':
                same_c = c.op == p.op and not (pw & set(c.rd[:2]))
                if not same_c:
                    n = max(n, 3)
            if c.kind == 'valu':
                if c.dpp and vg(pw) & cr:
                    n = max(n, 2)
                if c.dpp and ('x', 'exec') in pw:
                    n = max(n, 5)
                if c.op.startswith('v_permlane') and vg(pw) & cr:
                    n = max(n, 2)
                if ('readlane' in c.op or 'readfirstlane' in c.op) and vg(pw) & cr:
                    n = max(n, 1)
                if ('readlane' in c.op or 'readfirstlane' in c.op or 'writelane' in c.op or 'permlane' in c.op) and ('x', 'exec') in pw:
                    n = max(n, 4)
                if ('readlane' in c.op or 'writelane' in c.op) and sg(pw) & cr:
                    n = max(n, 4)
                if sg(pw) & cr:
                    n = max(n, 2)
                if re.sub(r'_(e32|e64)$', '', p.op) in TRANS and pw & cr:
                    n = max(n, 1)
                if ('op_sel' in p.text and not p.op.startswith('v_pk') and not isdot or 'sdwa' in p.op) and pw & (cr | cw):
                    n = max(n, 1)
            if c.kind in ('vload', 'vstore') and sg(pw) & cr:
                n = max(n, 5)
            if c.kind in ('salu', 'ctl', 'smem') and (sg(pw) | ({('x', 'exec')} & pw)) & cr:
                n = max(n, 4)
        if p.kind == 'vstore' and len(p.data) >= 3 and set(p.data) & cw:
            n = max(n, 2)
        if p.kind == 'salu' and ('x', 'm0') in pw and ('x', 'm0') in cr:
            n = max(n, 1)
        return n

    def _pad(self, ins):
        need = 0
        for h in self.hists:
            dist = 0
            for p in reversed(h):
                k = self._need(p, ins) - dist
                need = max(need, k)
                dist += p.states
                if dist >= 20:
                    break
        while need > 0:
            k = min(need, 16)
            self._emit(Ins('s_nop %d' % (k - 1)))
            need -= k

    def __call__(self, text):
        for t in text.strip().split('\n'):
            t = t.strip()
            if not t:
                continue
            ins = Ins(t)
            self._auto_wait(ins)
            self._pad(ins)
            self._emit(ins)
            if ins.kind == 'vload':
                self.vm.append(set(ins.wr))
            elif ins.kind == 'vstore':
                self.vm.append(set())
            elif ins.kind == 'dsr':
                self.lg.append(set(ins.wr))
            elif ins.kind == 'dsw':
                self.lg.append(set())
            elif ins.kind == 'smem':
                self.sm |= set(ins.wr)
            if self.bg_every and self.bg:
                self._bgc += 1
                if self._bgc >= self.bg_every:
                    self._bgc = 0
                    ev, self.bg_every = self.bg_every, 0
                    self.bg.pop(0)()
                    self.bg_every = ev

    def text(self):
        return '\n'.join(self.lines) + '\n'


def v(i, n=1):
    return 'v%d' % i if n == 1 else 'v[%d:%d]' % (i, i + n - 1)


def a(i, n=1):
    return 'a%d' % i if n == 1 else 'a[%d:%d]' % (i, i + n - 1)


def s(i, n=1):
    return 's%d' % i if n == 1 else 's[%d:%d]' % (i, i + n - 1)


def r(i, n=1):
    return v(i, n) if i < 256 else a(i - 256, n)
```

```python
from common import *
from k1 import mfma16, cvt

E1, E2 = 0, 16384


class ColRegs:
    def __init__(self, base):
        R = Regs(base)
        self.B1 = R(8, 4)
        self.TWF = R(16, 2)
        self.FC = R(8, 4)
        self.FS = R(8, 4)
        self.FN = R(8, 4)
        self.TWI = R(16, 2)
        self.LA = R(8, 4)
        self.X = R(16, 4)
        self.W = R(16, 4)
        self.D = R(32, 4)
        self.D2 = R(32, 4)
        self.SQ = self.D2 + 16
        self.T = R(8, 2)
        self.VX, self.VW1, self.VR1, self.VW2, self.VR2, self.VSQ = [R() for _ in range(6)]
        self.VWT = self.T + 2
        self.end = R.n


def col_tables(A, M, C):
    T, LANE = C.T, M.LANE
    JF, GF, RF = T + 4, T + 5, T + 6
    CS, SN = C.D, C.D + 8
    A('v_and_b32 v%d, 15, v%d' % (T, LANE))
    A('v_lshlrev_b32 v%d, 2, v%d' % (T + 1, T))
    A('v_add_u32 v%d, s%d, v%d' % (T + 1, M.S_WV, T + 1))
    A('v_cvt_f32_ubyte0 v%d, v%d' % (JF, T + 1))
    A('v_lshrrev_b32 v%d, 4, v%d' % (T + 1, LANE))
    A('v_cvt_f32_ubyte0 v%d, v%d' % (GF, T + 1))
    A('v_mul_f32 v%d, v%d, v%d' % (T + 2, JF, GF))
    A('v_mul_f32 v%d, %s, v%d' % (T + 3, fl(4.0 / 64), T + 2))
    for i in range(4):
        A('v_fmamk_f32 v%d, v%d, %s, v%d' % (T, JF, fl(i / 64.0), T + 3))
        A('v_cos_f32 v%d, v%d' % (CS + i, T))
        A('v_sin_f32 v%d, v%d' % (SN + i, T))
    for i in range(4):
        cvt(A, C.B1 + i, CS + i, SN + i)
        cvt(A, C.B1 + 4 + i, SN + i, CS + i, True, False)
    A('v_mul_f32 v%d, %s, v%d' % (T + 3, fl(-8.0 / 2048), T + 2))
    for i in range(8):
        A('v_fmamk_f32 v%d, v%d, %s, v%d' % (T, JF, fl(-i / 2048.0), T + 3))
        A('v_cos_f32 v%d, v%d' % (C.TWF + i, T))
        A('v_sin_f32 v%d, v%d' % (C.TWF + 8 + i, T))
    A('v_and_b32 v%d, 15, v%d' % (T, LANE))
    A('v_and_b32 v%d, 12, v%d' % (T + 1, LANE))
    A('v_add_u32 v%d, v%d, v%d' % (T, T, T + 1))
    A('v_cvt_f32_ubyte0 v%d, v%d' % (RF, T))
    for i in range(2):
        if i:
            A('v_add_f32 v%d, 4.0, v%d' % (T + 7, RF))
        mm = T + 7 if i else RF
        A('v_mul_f32 v%d, v%d, v%d' % (T + 2, mm, GF))
        A('v_mul_f32 v%d, %s, v%d' % (T + 3, fl(0.25), T + 2))
        for j in range(8):
            A('v_fmamk_f32 v%d, v%d, %s, v%d' % (T, mm, fl(j / 32.0), T + 3))
            A('v_cos_f32 v%d, v%d' % (CS + j, T))
            A('v_sin_f32 v%d, v%d' % (SN + j, T))
        for j in range(4):
            cvt(A, C.FC + 4 * i + j, CS + 2 * j, CS + 2 * j + 1)
            cvt(A, C.FS + 4 * i + j, SN + 2 * j, SN + 2 * j + 1)
            cvt(A, C.FN + 4 * i + j, SN + 2 * j, SN + 2 * j + 1, True, True)
    A('v_cvt_f32_ubyte0 v%d, s%d' % (T, M.S_WV))
    A('v_fmamk_f32 v%d, v%d, %s, v%d' % (JF, GF, fl(16.0), T))
    for ib in range(2):
        mm = T + 7 if ib else RF
        A('v_mul_f32 v%d, v%d, v%d' % (T + 2, mm, JF))
        A('v_mul_f32 v%d, %s, v%d' % (T + 3, fl(1.0 / 2048), T + 2))
        for t in range(4):
            A('v_fmamk_f32 v%d, v%d, %s, v%d' % (T, mm, fl(4.0 * t / 2048), T + 3))
            A('v_cos_f32 v%d, v%d' % (C.TWI + 4 * ib + t, T))
            A('v_sin_f32 v%d, v%d' % (C.TWI + 8 + 4 * ib + t, T))
    A('v_bfe_u32 v%d, v%d, 1, 3' % (T, LANE))
    A('v_cvt_f32_ubyte0 v%d, v%d' % (RF, T))
    A('v_and_b32 v%d, 1, v%d' % (T, LANE))
    A('v_cvt_f32_ubyte0 v%d, v%d' % (T + 1, T))
    A('v_mul_f32 v%d, %s, v%d' % (T + 1, fl(-0.25), T + 1))
    for tau in range(2):
        if tau:
            A('v_add_f32 v%d, %s, v%d' % (RF, fl(8.0), RF))
        A('v_mul_f32 v%d, v%d, v%d' % (T + 2, RF, JF))
        A('v_fmamk_f32 v%d, v%d, %s, v%d' % (T + 3, T + 2, fl(1.0 / 64), T + 1))
        for t in range(4):
            A('v_fmamk_f32 v%d, v%d, %s, v%d' % (T, RF, fl(4.0 * t / 64), T + 3))
            A('v_cos_f32 v%d, v%d' % (CS + t, T))
            A('v_sin_f32 v%d, v%d' % (SN + t, T))
        for t in range(4):
            cvt(A, C.LA + 4 * tau + t, CS + t, SN + t, False, True)
    A('v_bfe_u32 v%d, v0, 1, 2' % T)
    A('v_bfe_u32 v%d, v0, 3, 2' % (T + 1))
    A('s_lshl_b32 s%d, s%d, 2' % (M.S_A, M.S_WV))
    A('v_or_b32 v%d, s%d, v%d' % (T + 1, M.S_A, T + 1))
    A('v_lshlrev_b32 v%d, 1, v%d' % (T + 2, T))
    A('v_xor_b32 v%d, v%d, v%d' % (T + 1, T + 1, T + 2))
    A('v_lshlrev_b32 v%d, 4, v%d' % (T + 1, T + 1))
    A('v_lshl_add_u32 v%d, v%d, 8, v%d' % (T + 1, T, T + 1))
    A('v_bfe_u32 v%d, v0, 5, 1' % T)
    A('v_lshl_add_u32 v%d, v%d, 10, v%d' % (T + 1, T, T + 1))
    A('v_and_b32 v%d, 1, v0' % T)
    A('v_lshl_add_u32 v%d, v%d, 3, v%d' % (C.VW1, T, T + 1))
    A('v_lshrrev_b32 v%d, 4, v%d' % (T, LANE))
    A('v_lshlrev_b32 v%d, 1, v%d' % (T + 1, T))
    A('v_xor_b32 v%d, v%d, v%d' % (T + 1, T + 1, LANE))
    A('v_lshlrev_b32 v%d, 4, v%d' % (T + 1, T + 1))
    A('s_lshl_b32 s%d, s%d, 12' % (M.S_A, M.S_WV))
    A('v_add_u32 v%d, s%d, v%d' % (C.VR1, M.S_A, T + 1))
    A('v_and_b32 v%d, 7, v%d' % (T + 1, LANE))
    A('v_xor_b32 v%d, v%d, v%d' % (T + 1, T + 1, T))
    A('v_lshlrev_b32 v%d, 4, v%d' % (T + 1, T + 1))
    A('v_and_b32 v%d, 15, v%d' % (T, LANE))
    A('v_and_b32 v%d, 12, v%d' % (T + 2, LANE))
    A('v_add_u32 v%d, v%d, v%d' % (T, T, T + 2))
    A('v_lshl_add_u32 v%d, v%d, 7, v%d' % (T + 1, T, T + 1))
    A('s_lshl_b32 s%d, s%d, 13' % (M.S_A, M.S_WV))
    A('v_add_u32 v%d, s%d, v%d' % (C.VW2, M.S_A, T + 1))
    A('v_bfe_u32 v%d, v0, 3, 2' % T)
    A('v_bfe_u32 v%d, v0, 6, 1' % (T + 1))
    A('v_lshl_add_u32 v%d, v%d, 2, v%d' % (T, T + 1, T))
    A('v_xor_b32 v%d, v0, v%d' % (T, T))
    A('v_lshlrev_b32 v%d, 4, v%d' % (C.VR2, T))
    A('s_cmp_eq_u32 s2, 0')
    A('s_cselect_b32 s%d, 0x0c0c0c0c, 0' % M.S_PSEL)
    A('s_cselect_b32 s%d, s%d, 0x01000c0c' % (M.S_PSEL, M.S_PSEL))
    A('s_cselect_b32 s%d, 0, 1.0' % M.S_KEEP)
    A('s_mov_b32 s%d, 1.0' % (M.S_KEEP + 1))


def col_addr(A, M, C):
    T = C.T
    A('v_lshrrev_b32 v%d, 3, v0' % T)
    A('v_and_b32 v%d, 7, v0' % (T + 1))
    A('v_lshlrev_b32 v%d, 4, v%d' % (T + 1, T + 1))
    A('v_lshl_add_u32 v%d, v%d, 9, v%d' % (C.VX, T, T + 1))
    A('s_lshl_b32 s%d, s2, 14' % M.S_A)
    A('v_add_u32 v%d, s%d, v%d' % (C.VX, M.S_A, C.VX))
    A('v_lshlrev_b32 v%d, 4, v0' % C.VSQ)


def col_load_w(A, M, C):
    T = C.T
    A('v_lshrrev_b32 v%d, 4, v%d' % (T, M.LANE))
    A('v_and_b32 v%d, 15, v%d' % (T + 1, M.LANE))
    A('v_lshlrev_b32 v%d, 4, v%d' % (T + 1, T + 1))
    A('v_lshl_add_u32 v%d, v%d, 12, v%d' % (C.VWT, T, T + 1))
    A('s_lshl_b32 s%d, s2, 14' % M.S_A)
    A('s_lshl_b32 s%d, s%d, 8' % (M.S_B, M.S_WV))
    A('s_add_u32 s%d, s%d, s%d' % (M.S_A, M.S_A, M.S_B))
    A('s_add_u32 s%d, s%d, 0x%x' % (M.S_A, M.S_A, OFF['WT']))
    for i in range(4):
        A('buffer_load_dwordx4 %s, v%d, %s, s%d offen offset:%d' % (v(C.W + 4 * i, 4), C.VWT, M.WS, M.S_A, 1024 * i))


def col_load_x(A, M, C):
    for m in range(4):
        A('buffer_load_dwordx4 %s, v%d, %s, 0 offen offset:%d sc1' % (v(C.X + 4 * m, 4), C.VX, M.WS, 128 * m))


def col_load_q(A, M, C):
    for h in range(8):
        A('s_add_u32 s%d, s%d, %d' % (M.S_C, M.S_SSQ, 4096 * h))
        A('buffer_load_dwordx4 %s, v%d, %s, s%d offen sc1' % (v(C.D2 + 4 * h, 4), C.VSQ, M.WS, M.S_C))


def col_check(A, M, C, sleep):
    T = C.T
    lc, lr = A.newlabel('col_chk'), A.newlabel('col_retry')
    ev, A.bg_every = A.bg_every, 0
    A('s_mov_b64 vcc, -1')
    A('s_mov_b64 s[%d:%d], -1' % (M.S_A, M.S_A + 1))
    A('s_cmp_lg_u32 s%d, 0' % M.S_LAYER)
    A('s_cbranch_scc1 %s_go' % lr)
    A.label(lc)
    A('v_or3_b32 v%d, v%d, v%d, v%d' % (T, C.X, C.X + 4, C.X + 8))
    A('v_bitop3_b32 v%d, v%d, v%d, 1 bitop3:0xa8' % (T, T, C.X + 12))
    A('v_cmp_ne_u32 s[%d:%d], 0, v%d' % (M.S_A, M.S_A + 1, T))
    q = [C.D2 + 4 * i for i in range(8)]
    A('v_or3_b32 v%d, v%d, v%d, v%d' % (T, q[0], q[1], q[2]))
    A('v_or3_b32 v%d, v%d, v%d, v%d' % (T + 1, q[3], q[4], q[5]))
    A('v_or3_b32 v%d, v%d, v%d, v%d' % (T, T, q[6], q[7]))
    A('v_or_b32 v%d, v%d, v%d' % (T, T, T + 1))
    A('v_cmp_gt_i32 vcc, 0, v%d' % T)
    A('s_or_b64 s[%d:%d], vcc, s[%d:%d]' % (M.S_MK, M.S_MK + 1, M.S_A, M.S_A + 1))
    A('s_cbranch_scc1 %s' % lr)
    A.label(lc + '_ok')
    A.bg_every = ev

    def retry():
        A.label(lr)
        A.reset()
        A('s_sub_u32 s%d, s%d, 1' % (M.S_BUD, M.S_BUD))
        A('s_cbranch_scc1 %s_out' % lr)
        if sleep:
            A('s_sleep %d' % sleep)
        A.label(lr + '_go')
        A('s_cmp_eq_u64 s[%d:%d], 0' % (M.S_A, M.S_A + 1))
        A('s_cbranch_scc1 %s_q' % lr)
        col_load_x(A, M, C)
        A.label(lr + '_q')
        A('s_cbranch_vccz %s_w' % lr)
        col_load_q(A, M, C)
        A.label(lr + '_w')
        A.wait(vm=0)
        A('s_branch %s' % lc)
        A.label(lr + '_out')
        A('s_mov_b32 s%d, 0' % M.S_BUD)
        A('s_branch %s_ok' % lc)
    A.deferred.append(retry)


def cmul(A, ore, oim, re, im, wr, wi):
    A('v_mul_f32 v%d, v%d, v%d' % (ore, re, wr))
    A('v_mul_f32 v%d, v%d, v%d' % (oim, re, wi))
    A('v_fma_f32 v%d, -v%d, v%d, v%d' % (ore, im, wi, ore))
    A('v_fma_f32 v%d, v%d, v%d, v%d' % (oim, im, wr, oim))


def col_body(A, M, C):
    T, D, D2 = C.T, C.D, C.D2
    A('v_mov_b32 v%d, 0x3f80' % D)
    A('v_mov_b32 v%d, 1.0' % (D + 1))
    A('s_mov_b32 s%d, %s' % (M.S_A, fl(1e-5 * 640)))
    for h in range(8):
        for i in range(8):
            A('v_dot2_f32_bf16 v%d, v%d, v%d, %s' % (T + i, D2 + 4 * h + (i >> 1), D + (i & 1), 'v%d' % (T + i) if h else 's%d' % M.S_A))
    for i in range(8):
        A('v_mul_f32 v%d, %s, v%d' % (T + i, fl(2048.0 * 2048 / 640), T + i))
    for i in range(8):
        A('v_rsq_f32 v%d, v%d' % (C.SQ + i, T + i))
    U = D2
    for x in range(2):
        for e in range(2):
            Z = D + 16 * ((2 * x + e) & 1)
            for m in range(4):
                src = C.X + 4 * m + 2 * x + e
                if e == 0:
                    A('v_perm_b32 v%d, v%d, v%d, s%d' % (Z + 2 * m, src, src, M.S_PSEL))
                else:
                    A('v_lshlrev_b32 v%d, 16, v%d' % (Z + 2 * m, src))
                A('v_and_b32 v%d, 0xffff0000, v%d' % (Z + 2 * m + 1, src))
            sel = 'op_sel:[0,%d] op_sel_hi:[1,%d]' % (x, x)
            sel3 = 'op_sel:[0,%d,0] op_sel_hi:[1,%d,1]' % (x, x)
            P, Mi, Q, N = Z + 8, Z + 10, Z + 12, Z + 14
            for (m0, pp, mm) in ((0, P, Mi), (1, Q, N)):
                A('v_pk_mul_f32 %s, %s, %s %s' % (v(Z + 2 * m0, 2), v(Z + 2 * m0, 2), v(C.SQ + 2 * m0, 2), sel))
                A('v_pk_fma_f32 %s, %s, %s, %s %s' % (v(pp, 2), v(Z + 2 * m0 + 4, 2), v(C.SQ + 2 * m0 + 4, 2), v(Z + 2 * m0, 2), sel3))
                A('v_pk_fma_f32 %s, %s, %s, %s %s neg_lo:[1,0,0] neg_hi:[1,0,0]' % (v(mm, 2), v(Z + 2 * m0 + 4, 2), v(C.SQ + 2 * m0 + 4, 2), v(Z + 2 * m0, 2), sel3))
            A('v_pk_add_f32 %s, %s, %s' % (v(Z, 2), v(P, 2), v(Q, 2)))
            A('v_pk_add_f32 %s, %s, %s op_sel:[0,1] op_sel_hi:[1,0] neg_hi:[0,1]' % (v(Z + 2, 2), v(Mi, 2), v(N, 2)))
            A('v_pk_add_f32 %s, %s, %s neg_lo:[0,1] neg_hi:[0,1]' % (v(Z + 4, 2), v(P, 2), v(Q, 2)))
            A('v_pk_add_f32 %s, %s, %s op_sel:[0,1] op_sel_hi:[1,0] neg_lo:[0,1]' % (v(Z + 6, 2), v(Mi, 2), v(N, 2)))
            for w in range(4):
                cvt(A, U + 4 * w + 2 * e + x, Z + 2 * w, Z + 2 * w + 1)
    for w in range(4):
        for e in range(2):
            A('ds_write_b64 v%d, %s offset:%d' % (C.VW1, v(U + 4 * w + 2 * e, 2), E1 + (2 * w + e) * 2048))
    A.wait(lg=0)
    A('s_barrier')
    AF = D2 + 16
    for e in range(2):
        for i in range(2):
            A('ds_read_b128 %s, v%d offset:%d' % (v(AF + 8 * e + 4 * i, 4), C.VR1, E1 + (2 * e + i) * 1024))
    for e in range(2):
        for c in range(2):
            for i in range(2):
                mfma16(A, D + 16 * e + 8 * c + 4 * i, AF + 8 * e + 4 * i, C.B1 + 4 * c, None)

    def tw_fwd(e):
        for jj in range(4):
            for h in range(2):
                k = 2 * jj + h
                cmul(A, T + h, T + 2 + h, D + 16 * e + k, D + 16 * e + 8 + k, C.TWF + k, C.TWF + 8 + k)
            cvt(A, D + 16 * e + jj, T, T + 1)
            cvt(A, D + 16 * e + 8 + jj, T + 2, T + 3)

    def dft(e):
        br, bi = D + 16 * e, D + 16 * e + 8
        for i in range(2):
            mfma16(A, D2 + 16 * e + 4 * i, C.FC + 4 * i, br, None)
            mfma16(A, D2 + 16 * e + 8 + 4 * i, C.FN + 4 * i, br, None)
        for i in range(2):
            mfma16(A, D2 + 16 * e + 4 * i, C.FS + 4 * i, bi, D2 + 16 * e + 4 * i)
            mfma16(A, D2 + 16 * e + 8 + 4 * i, C.FC + 4 * i, bi, D2 + 16 * e + 8 + 4 * i)

    def filt(e):
        for jj in range(4):
            for h in range(2):
                k = 2 * jj + h
                src = C.W + 4 * jj + 2 * h + e
                A('v_lshlrev_b32 v%d, 16, v%d' % (T + 4, src))
                A('v_and_b32 v%d, 0xffff0000, v%d' % (T + 5, src))
                cmul(A, T + h, T + 2 + h, D2 + 16 * e + k, D2 + 16 * e + 8 + k, T + 4, T + 5)
            cvt(A, D2 + 16 * e + jj, T, T + 1)
            cvt(A, D2 + 16 * e + 8 + jj, T + 2, T + 3)

    def idft(e):
        ar, ai = D2 + 16 * e, D2 + 16 * e + 8
        for i in range(2):
            mfma16(A, D + 16 * e + 4 * i, ar, C.FC + 4 * i, None)
            mfma16(A, D + 16 * e + 8 + 4 * i, ar, C.FS + 4 * i, None)
        for i in range(2):
            mfma16(A, D + 16 * e + 4 * i, ai, C.FN + 4 * i, D + 16 * e + 4 * i)
            mfma16(A, D + 16 * e + 8 + 4 * i, ai, C.FC + 4 * i, D + 16 * e + 8 + 4 * i)

    def tw_inv(e):
        for k in range(8):
            o = T + 2 * (k & 1)
            cmul(A, o, o + 1, D + 16 * e + k, D + 16 * e + 8 + k, C.TWI + k, C.TWI + 8 + k)
            cvt(A, D + 16 * e + k, o, o + 1)

    def last(e):
        for ib in range(2):
            for tau in range(2):
                mfma16(A, D2 + 16 * e + 8 * ib + 4 * tau, C.LA + 4 * tau, D + 16 * e + 4 * ib, None)

    def put(e):
        for ib in range(2):
            for tau in range(2):
                A('ds_write_b128 v%d, %s offset:%d' % (T + 6 + tau, v(D2 + 16 * e + 8 * ib + 4 * tau, 4), E2 + e * 4096 + ib * 512))
    tw_fwd(0); dft(0); tw_fwd(1); dft(1)
    filt(0); idft(0); filt(1); idft(1)
    tw_inv(0); last(0)
    A('v_mov_b32 v%d, v%d' % (T + 6, C.VW2))
    A('v_xor_b32 v%d, 64, v%d' % (T + 7, C.VW2))
    tw_inv(1); put(0); last(1); put(1)
    A.wait(lg=0)
    A('s_barrier')
    A('s_mov_b32 s%d, 0x10000' % M.S_B)
    for e in range(2):
        for w in range(4):
            A('ds_read_b128 %s, v%d offset:%d' % (v(D + 16 * e + 4 * w, 4), C.VR2, E2 + w * 8192 + e * 4096))
    for e in range(2):
        for x in range(2):
            Y = lambda w: v(D + 16 * e + 4 * w + 2 * x, 2)
            Z = D2 + 16 * x
            P, Mi, Q, N = Z + 8, Z + 10, Z + 12, Z + 14
            for m in range(4):
                src = C.X + 4 * m + 2 * x + e
                A('v_lshlrev_b32 v%d, 16, v%d' % (Z + 2 * m, src))
                A('v_and_b32 v%d, 0xffff0000, v%d' % (Z + 2 * m + 1, src))
            A('v_pk_add_f32 %s, %s, %s' % (v(P, 2), Y(0), Y(2)))
            A('v_pk_add_f32 %s, %s, %s neg_lo:[0,1] neg_hi:[0,1]' % (v(Mi, 2), Y(0), Y(2)))
            A('v_pk_add_f32 %s, %s, %s' % (v(Q, 2), Y(1), Y(3)))
            A('v_pk_add_f32 %s, %s, %s neg_lo:[0,1] neg_hi:[0,1]' % (v(N, 2), Y(1), Y(3)))
            A('v_pk_add_f32 %s, %s, %s' % (v(T, 2), v(P, 2), v(Q, 2)))
            A('v_pk_add_f32 %s, %s, %s op_sel:[0,1] op_sel_hi:[1,0] neg_lo:[0,1]' % (v(T + 2, 2), v(Mi, 2), v(N, 2)))
            A('v_pk_add_f32 %s, %s, %s neg_lo:[0,1] neg_hi:[0,1]' % (v(T + 4, 2), v(P, 2), v(Q, 2)))
            A('v_pk_add_f32 %s, %s, %s op_sel:[0,1] op_sel_hi:[1,0] neg_hi:[0,1]' % (v(T + 6, 2), v(Mi, 2), v(N, 2)))
            for m in range(4):
                if e == 0:
                    A('v_pk_fma_f32 %s, %s, s[%d:%d], %s' % (v(Z + 2 * m, 2), v(T + 2 * m, 2), M.S_KEEP, M.S_KEEP + 1, v(Z + 2 * m, 2)))
                else:
                    A('v_pk_add_f32 %s, %s, %s' % (v(Z + 2 * m, 2), v(T + 2 * m, 2), v(Z + 2 * m, 2)))
                if e == 0 and x == 0:
                    A('v_and_or_b32 v%d, v%d, v%d, s%d' % (Z + 2 * m, Z + 2 * m, M.VM, M.S_B))
                    A('v_add_u32 v%d, s%d, v%d' % (Z + 2 * m + 1, M.S_TADD, Z + 2 * m + 1))
                    A('v_and_or_b32 v%d, v%d, v%d, s%d' % (Z + 2 * m + 1, Z + 2 * m + 1, M.VM, M.S_TOR))
                cvt(A, C.X + 4 * m + 2 * x + e, Z + 2 * m, Z + 2 * m + 1)
    for m in range(4):
        A('buffer_store_dwordx4 %s, v%d, %s, 0 offen offset:%d sc1' % (v(C.X + 4 * m, 4), C.VX, M.WS, 128 * m))
```

```python
import struct
from asmlib import Asm, v, a, s, r

S, D, F = 2048, 640, 1728
XB = 160 * 2048 * 8
WB = 640 * 1728 * 2
OFF = {}
_cur = 0
def _alloc(name, n):
    global _cur
    OFF[name] = _cur
    _cur += (n + 4095) // 4096 * 4096
for _n in ('X', 'WT'):
    _alloc(_n, XB)
for _n in ('W2F', 'W1F'):
    _alloc(_n, WB)
W2S_W = 95 * 1024
_alloc('W2S', 32 * W2S_W)
_alloc('SSQ0', 8192)
_alloc('B2F', 4096)
_alloc('TS', 2 * 1024 * 4 * 128)
_alloc('FILL', 0)
_alloc('SSQ2', 32768)
_alloc('FLG', 16384)
_alloc('H', 2048 * 1728 * 2)
FILL_BYTES = _cur - OFF['FILL']
_alloc('PAD', 16384)
WS_USED = _cur
TAGM = 0xfffe0000
OOB = 0x40000000

def f2u(x):
    return struct.unpack('<I', struct.pack('<f', x))[0]

def fl(x):
    return '0x%08x' % f2u(x)

class Regs:
    def __init__(self, start=0):
        self.n = start
        self.max = start
    def __call__(self, n=1, align=1):
        self.n = (self.n + align - 1) // align * align
        x = self.n
        self.n += n
        self.max = max(self.max, self.n)
        return x

def srd(A, dst, ptr, nbytes):
    A('s_mov_b32 s%d, s%d' % (dst, ptr))
    A('s_and_b32 s%d, s%d, 0xffff' % (dst + 1, ptr + 1))
    A('s_mov_b32 s%d, 0x%x' % (dst + 2, nbytes))
    A('s_mov_b32 s%d, 0x00020000' % (dst + 3))

def kernel_header(A, name):
    A.raw('.globl %s' % name)
    A.raw('.p2align 8')
    A.raw('.type %s,@function' % name)
    A.label(name)
    A.reset()

def kernel_desc(name, nvgpr, accum):
    return '''.amdhsa_kernel %s
  .amdhsa_next_free_vgpr %d
  .amdhsa_next_free_sgpr 102
  .amdhsa_accum_offset %d
  .amdhsa_group_segment_fixed_size 0
  .amdhsa_kernarg_size 88
  .amdhsa_user_sgpr_count 2
  .amdhsa_user_sgpr_kernarg_segment_ptr 1
  .amdhsa_system_sgpr_workgroup_id_x 1
.end_amdhsa_kernel
''' % (name, nvgpr, accum)

P_X, P_WR, P_WI, P_W1, P_B1, P_W2, P_B2, P_OUT, P_DBG, P_WS = 4, 6, 8, 12, 14, 16, 18, 20, 22, 24

def load_args(A):
    A('s_load_dwordx16 s[4:19], s[0:1], 0')
    A('s_load_dwordx4 s[20:23], s[0:1], 64')
    A('s_load_dwordx2 s[24:25], s[0:1], 80')


TS_S0 = 64
TS_N = 12
TS_SAVE = TS_S0 + 2 * TS_N


def stamp(A, i):
    if getattr(A, 'ts', False):
        A('%s s[%d:%d]' % ('s_memtime' if A.ts == 2 else 's_memrealtime', TS_S0 + 2 * i, TS_S0 + 2 * i + 1))


def stamp_init(A):
    if getattr(A, 'ts', False):
        for i in range(TS_N):
            A('s_mov_b32 s%d, 0' % (TS_S0 + 2 * i))
            A('s_mov_b32 s%d, 0' % (TS_SAVE + i))


def stamp_save(A):
    if getattr(A, 'ts', False):
        A.wait(lg=0)
        for i in range(TS_N):
            A('s_mov_b32 s%d, s%d' % (TS_SAVE + i, TS_S0 + 2 * i))


def stamp_flush(A, block, srd_, s_wave, last):
    if not getattr(A, 'ts', False):
        return
    A.wait(vm=0)
    stamp(A, last)
    A('s_mov_b64 exec, 1')
    A('s_lshl_b32 s3, s2, 2')
    A('s_add_u32 s3, s3, s%d' % s_wave)
    A('s_lshl_b32 s3, s3, 7')
    A('s_add_u32 s3, s3, 0x%x' % (OFF['TS'] + block * 1024 * 4 * 128))
    A('v_mov_b32 v1, 0')
    for i in range(2 * TS_N):
        A('v_mov_b32 v2, s%d' % (TS_S0 + 2 * i if i < TS_N else TS_SAVE + i - TS_N))
        A('buffer_store_dword v2, v1, %s, s3 offen offset:%d' % (srd_, 4 * i))


def marker_ops(t0, t1, regs):
    regs = list(regs)
    out = []
    acc = [None, None]
    k = 0
    while len(regs) >= 2:
        t = (t0, t1)[k]
        if acc[k] is None and len(regs) >= 3:
            out.append('v_max3_u32 v%d, v%d, v%d, v%d' % (t, regs[0], regs[1], regs[2]))
            regs = regs[3:]
            acc[k] = t
        elif acc[k] is None:
            k ^= 1
            continue
        else:
            out.append('v_max3_u32 v%d, v%d, v%d, v%d' % (t, t, regs[0], regs[1]))
            regs = regs[2:]
        k ^= 1
    last = regs + ([t1] if acc[1] is not None else [])
    if len(last) == 2:
        out.append('v_max3_u32 v%d, v%d, v%d, v%d' % (t0, t0, last[0], last[1]))
    elif len(last) == 1:
        out.append('v_max_u32 v%d, v%d, v%d' % (t0, t0, last[0]))
    return out


def marker_max(A, t0, t1, regs):
    for x in marker_ops(t0, t1, regs):
        A(x)
```

```python
import math
from common import *

N_W1, N_WT, N_X, N_W2, N_W2T, N_QF, N_Z = 128, 128, 128, 112, 72, 40, 248
B_W1 = 0
B_WT = B_W1 + N_W1
B_X = B_WT + N_WT
B_W2 = B_X + N_X
B_W2T = B_W2 + N_W2
B_QF = B_W2T + N_W2T
B_Z = B_QF + N_QF
K1_GRID = B_Z + N_Z
GROUPS = [(n, slice(b, b + c)) for n, b, c in (('w1', B_W1, N_W1), ('wt', B_WT, N_WT), ('x', B_X, N_X), ('w2', B_W2, N_W2), ('w2t', B_W2T, N_W2T), ('qf', B_QF, N_QF), ('z', B_Z, N_Z))]
K1_LDS = 80 * 272
SC = math.sqrt(2.0 / 640)
RH = math.sqrt(0.5)

S_WV, S_ROLE, S_IDX = 26, 27, 28
SRD_WS, SRD_IN = 32, 36
S_T = 40


def mfma16(A, d, x, y, c):
    A('v_mfma_f32_16x16x32_bf16 %s, %s, %s, %s' % (r(d, 4), r(x, 4), r(y, 4), '0' if c is None else r(c, 4)))


def cvt(A, d, x, y, nx=False, ny=False):
    f = lambda q, n: ('-' if n else '') + r(q) if not isinstance(q, str) else q
    A('v_cvt_pk_bf16_f32 %s, %s, %s' % (r(d), f(x, nx), f(y, ny)))


def emit_k1(A, name):
    def fin():
        A('s_branch K1_fin' if getattr(A, 'ts', False) else 's_endpgm')
    kernel_header(A, name)
    stamp_init(A)
    stamp(A, 0)
    load_args(A)
    R = Regs(1)
    LANE, T0, T1, T2, T3, T4, T5 = [R() for _ in range(7)]
    A('v_and_b32 v%d, 63, v0' % LANE)
    A('v_lshrrev_b32 v%d, 6, v0' % T0)
    A('v_readfirstlane_b32 s%d, v%d' % (S_WV, T0))
    A('s_cmp_ge_u32 s2, %d' % K1_GRID)
    A('s_cbranch_scc1 K1_exit')
    srd(A, SRD_WS, P_WS, WS_USED)
    stamp(A, 1)
    for nm, sl in GROUPS:
        if nm in getattr(A, 'skip', ()):
            A('s_sub_u32 s3, s2, %d' % sl.start)
            A('s_cmp_lt_u32 s3, %d' % (sl.stop - sl.start))
            A('s_cbranch_scc1 K1_exit')
    st_top = A.save()
    A('s_cmp_ge_u32 s2, %d' % B_W2T)
    A('s_cbranch_scc1 K1_misc')
    A('s_cmp_ge_u32 s2, %d' % B_X)
    A('s_cbranch_scc1 K1_direct')
    A('s_cmp_ge_u32 s2, %d' % B_WT)
    A('s_cbranch_scc1 K1_wt')

    VLD = R()
    VOA, VOB = R(), R()
    MDC = R()
    B1 = R(8, 4)
    TW = R(16, 2)
    A2 = R(32, 4)
    BF = R(32, 4)
    FR = R(32, 4)
    D1 = R(32, 4)
    DAT = D1
    D2 = FR
    SO = S_T
    S_ROW = S_T + 6

    A('s_and_b32 s%d, s2, 7' % (S_T + 8))
    A('s_lshr_b32 s%d, s2, 5' % (S_T + 9))
    A('s_lshl_b32 s%d, s%d, 3' % (S_T + 9, S_T + 9))
    A('s_add_u32 s%d, s%d, s%d' % (S_T + 8, S_T + 8, S_T + 9))
    A('s_cmp_ge_u32 s%d, 27' % (S_T + 8))
    A('s_cbranch_scc1 K1_exit')
    A('s_bfe_u32 s%d, s2, 0x20003' % (S_T + 9))
    A('s_lshl_b32 s%d, s%d, 2' % (S_IDX, S_T + 8))
    A('s_add_u32 s%d, s%d, s%d' % (S_IDX, S_IDX, S_T + 9))
    A('s_mov_b32 s%d, 1' % S_ROLE)
    srd(A, SRD_IN, P_W1, WB)
    A('v_lshrrev_b32 v%d, 1, v0' % T0)
    A('v_mul_u32_u24 v%d, 3456, v%d' % (VLD, T0))
    A('v_and_b32 v%d, 1, v0' % T0)
    A('v_lshl_add_u32 v%d, v%d, 4, v%d' % (VLD, T0, VLD))
    A('s_lshl_b32 s%d, s%d, 5' % (SO, S_IDX))
    for i in range(1, 5):
        A('s_add_u32 s%d, s%d, %d' % (SO + i, SO + i - 1, 128 * 3456))
    A('s_branch K1_load')
    st_w1 = A.save()

    A.label('K1_direct')
    A.restore(st_top)
    A('s_cmp_ge_u32 s2, %d' % B_W2)
    A('s_cbranch_scc1 K1_dw2')
    A('s_sub_u32 s%d, s2, %d' % (S_IDX, B_X))
    A('s_mov_b32 s%d, 0' % S_ROLE)
    srd(A, SRD_IN, P_X, S * D * 2)
    A('s_and_b32 s%d, s%d, 3' % (S_ROW, S_IDX))
    A('s_lshl_b32 s%d, s%d, 2' % (S_ROW, S_ROW))
    A('s_add_u32 s%d, s%d, s%d' % (S_ROW, S_ROW, S_WV))
    A('s_lshl_b32 s%d, s%d, 2' % (S_ROW, S_ROW))
    A('s_lshr_b32 s%d, s%d, 2' % (S_ROW + 1, S_IDX))
    A('s_lshl_b32 s%d, s%d, 5' % (SO, S_ROW))
    A('s_add_u32 s%d, s%d, s%d' % (SO, SO, S_ROW + 1))
    A('s_mul_i32 s%d, s%d, 1280' % (SO, SO))
    A('s_mov_b32 s%d, %d' % (S_T + 8, 32 * 1280))
    A('s_branch K1_daddr')
    st_a = A.save()
    A.label('K1_dw2')
    A.restore(st_top)
    A('s_sub_u32 s%d, s2, %d' % (S_IDX, B_W2))
    A('s_cmp_gt_u32 s%d, 108' % S_IDX)
    A('s_cbranch_scc1 K1_exit')
    A('s_mov_b32 s%d, 2' % S_ROLE)
    srd(A, SRD_IN, P_W2, WB)
    A('s_lshl_b32 s%d, s%d, 2' % (S_ROW, S_IDX))
    A('s_add_u32 s%d, s%d, s%d' % (S_ROW, S_ROW, S_WV))
    A('s_lshl_b32 s%d, s%d, 2' % (S_ROW, S_ROW))
    A('s_mul_i32 s%d, s%d, 1280' % (SO, S_ROW))
    A('s_mov_b32 s%d, 1280' % (S_T + 8))
    A('s_cmp_lt_u32 s%d, 108' % S_IDX)
    A('s_cbranch_scc1 K1_daddr')
    A('s_cmp_lg_u32 s%d, 0' % S_WV)
    A('s_cbranch_scc1 K1_exit')
    A('s_mov_b32 s%d, 3' % S_ROLE)
    srd(A, SRD_IN, P_B2, 1280)
    A('s_mov_b32 s%d, 0' % SO)
    A.label('K1_daddr')
    A.merge(st_a, A.save())
    A('v_and_b32 v%d, 3, v%d' % (T0, LANE))
    A('v_mul_lo_u32 v%d, v%d, s%d' % (VLD, T0, S_T + 8))
    A('v_lshrrev_b32 v%d, 4, v%d' % (T0, LANE))
    A('v_mul_u32_u24 v%d, 320, v%d' % (T0, T0))
    A('v_add_u32 v%d, v%d, v%d' % (VLD, VLD, T0))
    A('v_bfe_u32 v%d, v%d, 2, 2' % (T0, LANE))
    A('v_lshl_add_u32 v%d, v%d, 4, v%d' % (VLD, T0, VLD))
    for i in range(1, 5):
        A('s_add_u32 s%d, s%d, 64' % (SO + i, SO + i - 1))

    A.label('K1_load')
    A.merge(st_w1, A.save())
    for i in range(5):
        A('buffer_load_dwordx4 %s, v%d, s[%d:%d], s%d offen' % (v(DAT + 4 * i, 4), VLD, SRD_IN, SRD_IN + 3, SO + i))

    KF, GF = T4, T5
    A('v_and_b32 v%d, 15, v%d' % (T0, LANE))
    A('v_cvt_f32_ubyte0 v%d, v%d' % (KF, T0))
    A('v_lshrrev_b32 v%d, 4, v%d' % (T0, LANE))
    A('v_cvt_f32_ubyte0 v%d, v%d' % (GF, T0))
    C, Sn = BF, BF + 8
    A('v_mul_f32 v%d, v%d, v%d' % (T0, KF, GF))
    A('v_mul_f32 v%d, %s, v%d' % (T1, fl(0.25), T0))
    for i in range(5):
        A('v_fmamk_f32 v%d, v%d, %s, v%d' % (T2, KF, fl(0.05 * i), T1))
        A('v_cos_f32 v%d, v%d' % (C + i, T2))
        A('v_sin_f32 v%d, v%d' % (Sn + i, T2))
    cvt(A, B1 + 0, C + 0, C + 1)
    cvt(A, B1 + 1, C + 2, C + 3)
    cvt(A, B1 + 2, C + 4, '0')
    A('v_mov_b32 v%d, 0' % (B1 + 3))
    cvt(A, B1 + 4, Sn + 0, Sn + 1, True, True)
    cvt(A, B1 + 5, Sn + 2, Sn + 3, True, True)
    cvt(A, B1 + 6, Sn + 4, '0', True)
    A('v_mov_b32 v%d, 0' % (B1 + 7))
    A('v_mul_f32 v%d, %s, v%d' % (T1, fl(8.0 / 640), T0))
    for j in range(8):
        A('v_fmamk_f32 v%d, v%d, %s, v%d' % (T2, KF, fl(j / 640.0), T1))
        A('v_cos_f32 v%d, v%d' % (C + j, T2))
        A('v_sin_f32 v%d, v%d' % (Sn + j, T2))
    for j in range(8):
        A('v_mul_f32 v%d, %s, v%d' % (TW + 2 * j, fl(SC), C + j))
        A('v_mul_f32 v%d, %s, v%d' % (TW + 2 * j + 1, fl(-SC), Sn + j))
    A('v_bfe_u32 v%d, v%d, 1, 3' % (T0, LANE))
    A('v_cvt_f32_ubyte0 v%d, v%d' % (T3, T0))
    A('v_and_b32 v%d, 1, v%d' % (T0, LANE))
    A('v_cvt_f32_ubyte0 v%d, v%d' % (T0, T0))
    A('v_fma_f32 v%d, v%d, v%d, v%d' % (T0, T3, GF, T0))
    A('v_mul_f32 v%d, %s, v%d' % (T1, fl(0.25), T0))
    for j in range(8):
        A('v_fmamk_f32 v%d, v%d, %s, v%d' % (T2, T3, fl(j / 32.0), T1))
        A('v_cos_f32 v%d, v%d' % (C + j, T2))
        A('v_sin_f32 v%d, v%d' % (Sn + j, T2))
    rc = lambda j, m: [(C + j, False), (Sn + j, True), (C + j, True), (Sn + j, False)][m & 3]
    rs = lambda j, m: [(Sn + j, False), (C + j, False), (Sn + j, True), (C + j, True)][m & 3]
    for T in range(4):
        for part, f in ((0, rc), (1, rs)):
            for jj in range(4):
                x, y = f(2 * jj, 2 * jj * T), f(2 * jj + 1, (2 * jj + 1) * T)
                cvt(A, A2 + (T * 2 + part) * 4 + jj, x[0], y[0], x[1], y[1])
    A('v_and_b32 v%d, 15, v%d' % (T0, LANE))
    A('v_lshrrev_b32 v%d, 4, v%d' % (T1, LANE))
    A('v_lshl_add_u32 v%d, v%d, 2, v%d' % (T4, T0, T1))
    A('v_cmp_gt_u32 s[%d:%d], 11, v%d' % (S_T + 10, S_T + 11, T0))
    A('v_add_u32 v%d, -1, v%d' % (T0, T0))
    A('v_cmp_gt_u32 s[%d:%d], 9, v%d' % (S_T + 12, S_T + 13, T0))
    A('v_cmp_eq_u32 vcc, 0, v%d' % LANE)
    A('v_mov_b32 v%d, %s' % (T0, fl(RH)))
    stamp(A, 2)
    if getattr(A, 'ts', False):
        A.wait(vm=0)
    stamp(A, 3)
    A('s_cmp_eq_u32 s%d, 1' % S_ROLE)
    A('s_cbranch_scc0 K1_perm')
    st_pre = A.save()

    A('v_cndmask_b32 v%d, 1.0, 0, vcc' % MDC)
    A('v_lshrrev_b32 v%d, 4, v0' % T0)
    A('v_add_lshl_u32 v%d, v%d, v0, 4' % (T0, T0))
    for i in range(5):
        A('ds_write_b128 v%d, %s offset:%d' % (T0, v(DAT + 4 * i, 4), i * 16 * 272))
    A('v_lshrrev_b32 v%d, 4, v%d' % (T0, LANE))
    A('v_mul_u32_u24 v%d, 20, v%d' % (T0, T0))
    A('v_and_b32 v%d, 3, v%d' % (T1, LANE))
    A('v_add_u32 v%d, v%d, v%d' % (T0, T0, T1))
    A('v_mul_u32_u24 v%d, 272, v%d' % (T0, T0))
    A('s_lshl_b32 s%d, s%d, 3' % (S_T + 8, S_WV))
    A('v_add_u32 v%d, s%d, v%d' % (T0, S_T + 8, T0))
    A('v_bfe_u32 v%d, v%d, 2, 2' % (T1, LANE))
    A('v_mul_u32_u24 v%d, %d, v%d' % (T1, 4 * 272, T1))
    A('v_add_u32 v%d, v%d, v%d' % (T1, T1, T0))
    A.wait(lg=0)
    A('s_barrier')
    for j in range(8):
        A('ds_read_b64_tr_b16 %s, v%d offset:%d' % (v(FR + 4 * j, 2), T1, j * 32))
        A('ds_read_b64_tr_b16 %s, v%d offset:%d' % (v(FR + 4 * j + 2, 2), T0, j * 32 + 16 * 272))
    A('s_lshr_b32 s%d, s%d, 1' % (S_T + 8, S_IDX))
    A('s_mul_i32 s%d, s%d, 40960' % (S_T + 8, S_T + 8))
    A('s_and_b32 s%d, s%d, 1' % (S_T + 9, S_IDX))
    A('s_lshl_b32 s%d, s%d, 8' % (S_T + 9, S_T + 9))
    A('s_add_u32 s%d, s%d, s%d' % (S_T + 8, S_T + 8, S_T + 9))
    A('s_and_b32 s%d, s%d, 1' % (S_T + 9, S_WV))
    A('s_lshl_b32 s%d, s%d, 7' % (S_T + 9, S_T + 9))
    A('s_add_u32 s%d, s%d, s%d' % (S_T + 8, S_T + 8, S_T + 9))
    A('s_lshr_b32 s%d, s%d, 1' % (S_T + 9, S_WV))
    A('s_lshl_b32 s%d, s%d, 6' % (S_T + 9, S_T + 9))
    A('s_add_u32 s%d, s%d, s%d' % (S_T + 8, S_T + 8, S_T + 9))
    A('s_add_u32 s%d, s%d, 0x%x' % (SO, S_T + 8, OFF['W1F']))
    A('v_lshlrev_b32 v%d, 9, v%d' % (VOA, T4))
    A('v_add_u32 v%d, %d, v%d' % (VOB, 40 * 512, VOA))
    A('s_branch K1_core')
    st_w1 = A.save()

    A.label('K1_perm')
    A.restore(st_pre)
    A('v_cndmask_b32 v%d, 1.0, v%d, vcc' % (MDC, T0))
    A('s_mov_b32 s%d, 0x05040100' % (S_T + 8))
    A('s_mov_b32 s%d, 0x07060302' % (S_T + 9))
    for j in range(8):
        w_ = j >> 1
        sel = S_T + 8 + (j & 1)
        A('v_perm_b32 v%d, v%d, v%d, s%d' % (FR + 4 * j, DAT + 4 + w_, DAT + w_, sel))
        A('v_perm_b32 v%d, v%d, v%d, s%d' % (FR + 4 * j + 1, DAT + 12 + w_, DAT + 8 + w_, sel))
        if j & 1:
            A('v_lshrrev_b32 v%d, 16, v%d' % (FR + 4 * j + 2, DAT + 16 + w_))
        else:
            A('v_and_b32 v%d, 0xffff, v%d' % (FR + 4 * j + 2, DAT + 16 + w_))
        A('v_mov_b32 v%d, 0' % (FR + 4 * j + 3))
    A('s_cmp_eq_u32 s%d, 0' % S_ROLE)
    A('s_cbranch_scc0 K1_ow2')
    st_pre = A.save()
    A('s_mov_b32 s%d, 0x3f803f80' % (S_T + 8))
    A('v_mov_b32 v%d, 0' % T0)
    A('v_mov_b32 v%d, 0' % T1)
    for i in range(20):
        A('v_dot2_f32_bf16 v%d, v%d, v%d, v%d' % (T0, DAT + i, DAT + i, T0))
        A('v_dot2_f32_bf16 v%d, v%d, s%d, v%d' % (T1, DAT + i, S_T + 8, T1))
    for rr in (4, 8):
        A('v_add_f32_dpp v%d, v%d, v%d row_ror:%d row_mask:0xf bank_mask:0xf' % (T0, T0, T0, rr))
        A('v_add_f32_dpp v%d, v%d, v%d row_ror:%d row_mask:0xf bank_mask:0xf' % (T1, T1, T1, rr))
    for op in ('v_permlane16_swap_b32', 'v_permlane32_swap_b32'):
        A('v_mov_b32 v%d, v%d' % (T2, T0))
        A('v_mov_b32 v%d, v%d' % (T3, T1))
        A('%s v%d, v%d' % (op, T0, T2))
        A('%s v%d, v%d' % (op, T1, T3))
        A('v_add_f32 v%d, v%d, v%d' % (T0, T0, T2))
        A('v_add_f32 v%d, v%d, v%d' % (T1, T1, T3))
    A('v_mul_f32 v%d, %s, v%d' % (T2, fl(-1.0 / 640), T1))
    A('v_fma_f32 v%d, v%d, v%d, v%d' % (T0, T2, T1, T0))
    A('v_max_f32 v%d, 0, v%d' % (T0, T0))
    A('v_and_b32 v%d, 0xffff0000, v%d' % (T1, T0))
    A('v_sub_f32 v%d, v%d, v%d' % (T1, T0, T1))
    A('v_cmp_gt_u32 s[%d:%d], 4, v%d' % (S_T + 8, S_T + 9, LANE))
    A('v_cndmask_b32 v%d, v%d, v%d, s[%d:%d]' % (T0, T1, T0, S_T + 8, S_T + 9))
    A('v_cmp_gt_u32 s[%d:%d], 8, v%d' % (S_T + 8, S_T + 9, LANE))
    A('v_cndmask_b32 v%d, 0, v%d, s[%d:%d]' % (T0, T0, S_T + 8, S_T + 9))
    A('v_and_b32 v%d, 3, v%d' % (T1, LANE))
    A('v_add_u32 v%d, s%d, v%d' % (T1, S_ROW, T1))
    A('v_bfe_u32 v%d, v%d, 1, 3' % (T2, T1))
    A('v_lshlrev_b32 v%d, 4, v%d' % (T2, T2))
    A('v_lshrrev_b32 v%d, 4, v%d' % (T3, T1))
    A('v_lshl_add_u32 v%d, v%d, 2, v%d' % (T2, T3, T2))
    A('v_and_b32 v%d, 1, v%d' % (T3, T1))
    A('v_lshl_add_u32 v%d, v%d, 1, v%d' % (T2, T3, T2))
    A('v_lshrrev_b32 v%d, 2, v%d' % (T3, LANE))
    A('v_lshl_add_u32 v%d, v%d, 12, v%d' % (T2, T3, T2))
    A('v_cmp_gt_u32 s[%d:%d], 32, v%d' % (S_T + 8, S_T + 9, LANE))
    A('v_mov_b32 v%d, 0x%x' % (T3, OOB))
    A('v_cndmask_b32 v%d, v%d, v%d, s[%d:%d]' % (T2, T3, T2, S_T + 8, S_T + 9))
    A('s_lshl_b32 s%d, s%d, 7' % (S_T + 8, S_ROW + 1))
    A('s_add_u32 s%d, s%d, 0x%x' % (S_T + 8, S_T + 8, OFF['SSQ0']))
    A('buffer_store_short_d16_hi v%d, v%d, s[%d:%d], s%d offen' % (T0, T2, SRD_WS, SRD_WS + 3, S_T + 8))
    A('s_lshl_b32 s%d, s%d, 6' % (SO, S_ROW + 1))
    A('s_add_u32 s%d, s%d, s%d' % (SO, SO, S_ROW))
    A('s_lshl_b32 s%d, s%d, 3' % (SO, SO))
    A('s_add_u32 s%d, s%d, 0x%x' % (SO, SO, OFF['X']))
    A('s_add_u32 s%d, s%d, 16384' % (SO + 1, SO))
    A('v_lshlrev_b32 v%d, 15, v%d' % (VOA, T4))
    A('v_add_u32 v%d, %d, v%d' % (VOB, 40 * 32768, VOA))
    A('s_branch K1_core')
    st_x = A.save()
    A.label('K1_ow2')
    A.restore(st_pre)
    A('v_lshrrev_b32 v%d, 1, v%d' % (T0, T4))
    A('v_mul_u32_u24 v%d, 52, v%d' % (T1, T0))
    A('v_lshrrev_b32 v%d, 8, v%d' % (T1, T1))
    A('v_mul_u32_u24 v%d, 5, v%d' % (T2, T1))
    A('v_sub_u32 v%d, v%d, v%d' % (T2, T0, T2))
    A('v_mul_u32_u24 v%d, %d, v%d' % (VOA, 54 * 5120, T1))
    A('v_lshl_add_u32 v%d, v%d, 10, v%d' % (VOA, T2, VOA))
    A('v_and_b32 v%d, 1, v%d' % (T0, T4))
    A('v_lshl_add_u32 v%d, v%d, 7, v%d' % (VOA, T0, VOA))
    A('v_add_u32 v%d, %d, v%d' % (VOB, 4 * 54 * 5120, VOA))
    A('s_lshr_b32 s%d, s%d, 5' % (S_T + 8, S_ROW))
    A('s_mul_i32 s%d, s%d, 5120' % (SO, S_T + 8))
    A('s_bfe_u32 s%d, s%d, 0x20003' % (S_T + 8, S_ROW))
    A('s_lshl_b32 s%d, s%d, 8' % (S_T + 8, S_T + 8))
    A('s_add_u32 s%d, s%d, s%d' % (SO, SO, S_T + 8))
    A('s_and_b32 s%d, s%d, 4' % (S_T + 8, S_ROW))
    A('s_lshl_b32 s%d, s%d, 1' % (S_T + 8, S_T + 8))
    A('s_add_u32 s%d, s%d, s%d' % (SO, SO, S_T + 8))
    A('s_add_u32 s%d, s%d, 0x%x' % (SO, SO, OFF['W2F']))
    A('s_cmp_eq_u32 s%d, 2' % S_ROLE)
    A('s_cbranch_scc1 K1_core')
    A('v_lshlrev_b32 v%d, 5, v%d' % (VOA, T4))
    A('v_add_u32 v%d, %d, v%d' % (VOB, 40 * 32, VOA))
    A('s_mov_b32 s%d, 0x%x' % (SO, OFF['B2F']))

    A.label('K1_core')
    A.merge(st_w1, st_x, A.save())
    stamp(A, 4)
    A('v_mov_b32 v%d, 0x%x' % (T3, OOB))
    A('v_cndmask_b32 v%d, v%d, v%d, s[%d:%d]' % (VOA, T3, VOA, S_T + 10, S_T + 11))
    A('v_cndmask_b32 v%d, v%d, v%d, s[%d:%d]' % (VOB, T3, VOB, S_T + 12, S_T + 13))

    def stage1(jj):
        base = D1 + 16 * (jj & 1)
        for h in range(2):
            mfma16(A, base + 8 * h, FR + 4 * (2 * jj + h), B1, None)
            mfma16(A, base + 8 * h + 4, FR + 4 * (2 * jj + h), B1 + 4, None)

    def twid(jj):
        base = D1 + 16 * (jj & 1)
        for t in range(4):
            for h in range(2):
                re, im = base + 8 * h + t, base + 8 * h + 4 + t
                wr, wi = TW + 2 * (2 * jj + h), TW + 2 * (2 * jj + h) + 1
                A('v_mul_f32 v%d, v%d, v%d' % (T0 + h, re, wr))
                A('v_mul_f32 v%d, v%d, v%d' % (T2 + h, re, wi))
                A('v_fma_f32 v%d, -v%d, v%d, v%d' % (T0 + h, im, wi, T0 + h))
                A('v_fma_f32 v%d, v%d, v%d, v%d' % (T2 + h, im, wr, T2 + h))
            cvt(A, BF + 8 * t + jj, T0, T1)
            cvt(A, BF + 8 * t + 4 + jj, T2, T3)
    stage1(0)
    stage1(1)
    twid(0)
    stage1(2)
    twid(1)
    stage1(3)
    twid(2)
    twid(3)
    for n in range(4):
        for T in range(4):
            mfma16(A, D2 + 16 * n + 4 * T, A2 + 8 * T, BF + 8 * n, None)
        for T in range(4):
            mfma16(A, D2 + 16 * n + 4 * T, A2 + 8 * T + 4, BF + 8 * n + 4, D2 + 16 * n + 4 * T)
    for n in range(4):
        d = D2 + 16 * n
        A('v_mul_f32 v%d, v%d, v%d' % (d, d, MDC))
        A('v_mul_f32 v%d, %s, v%d' % (T0, fl(RH), d + 8))
        A('v_cndmask_b32 v%d, v%d, v%d, vcc' % (d + 1, d + 1, T0))
    O = BF
    stamp(A, 5)
    A('s_cmp_eq_u32 s%d, 1' % S_ROLE)
    A('s_cbranch_scc1 K1_st1')
    A('s_cmp_eq_u32 s%d, 2' % S_ROLE)
    A('s_cbranch_scc1 K1_st2')
    A('s_cmp_eq_u32 s%d, 3' % S_ROLE)
    A('s_cbranch_scc1 K1_st3')
    st_out = A.save()
    for T in range(4):
        for n in range(4):
            d = D2 + 16 * n + 4 * T
            if n % 2 == 0:
                A('v_add_u32 v%d, 0x10000, v%d' % (d, d))
                A('v_and_b32 v%d, 0x%x, v%d' % (d, TAGM, d))
            cvt(A, O + 8 * T + 2 * n, d, d + 1, False, T >= 2)
            cvt(A, O + 8 * T + 2 * n + 1, d + 2, d + 3, False, T >= 2)
        for h in range(2):
            A('buffer_store_dwordx4 %s, v%d, s[%d:%d], s%d offen offset:%d' %
              (v(O + 8 * T + 4 * h, 4), VOB if T >= 2 else VOA, SRD_WS, SRD_WS + 3, SO + (T & 1), 16 * h))
    fin()
    A.label('K1_st1')
    A.restore(st_out)
    for n in range(4):
        for T in range(4):
            d = D2 + 16 * n + 4 * T
            cvt(A, O + 8 * n + 2 * T, d, d + 1, False, T >= 2)
            cvt(A, O + 8 * n + 2 * T + 1, d + 2, d + 3, False, T >= 2)
        for Tp in range(2):
            A('buffer_store_dwordx4 %s, v%d, s[%d:%d], s%d offen offset:%d' %
              (v(O + 8 * n + 4 * Tp, 4), VOB if Tp else VOA, SRD_WS, SRD_WS + 3, SO, 16 * n))
    fin()
    A.label('K1_st2')
    A.restore(st_out)
    for T in range(4):
        for t in range(4):
            ng = T >= 2 and (t & 1) == 1
            o = O + 8 * T + 2 * t
            cvt(A, o, D2 + 4 * T + t, D2 + 16 + 4 * T + t, ng, ng)
            cvt(A, o + 1, D2 + 32 + 4 * T + t, D2 + 48 + 4 * T + t, ng, ng)
            A('buffer_store_dwordx2 %s, v%d, s[%d:%d], s%d offen offset:%d' %
              (v(o, 2), VOB if T >= 2 else VOA, SRD_WS, SRD_WS + 3, SO, (4 * (T & 1) + t) * 16))
    fin()
    A.label('K1_st3')
    A.restore(st_out)
    for T in range(4):
        if T >= 2:
            for t in (1, 3):
                A('v_xor_b32 v%d, 0x80000000, v%d' % (D2 + 4 * T + t, D2 + 4 * T + t))
        A('buffer_store_dwordx4 %s, v%d, s[%d:%d], s%d offen offset:%d' %
          (v(D2 + 4 * T, 4), VOB if T >= 2 else VOA, SRD_WS, SRD_WS + 3, SO, 16 * (T & 1)))
    fin()
    A.label('K1_exit')
    A('s_endpgm')
    nv = R.max

    A.label('K1_wt')
    A.restore(st_top)
    R = Regs(8)
    RS = 656
    DT = R(40, 4)
    VA, VL, VS = R(), R(), R()
    A('s_sub_u32 s%d, s2, %d' % (S_IDX, B_WT))
    A('s_and_b32 s%d, s%d, 1' % (S_T, S_WV))
    A('s_cmp_eq_u32 s%d, 0' % S_T)
    A('s_cselect_b32 s%d, s%d, s%d' % (SRD_IN, P_WR, P_WI))
    A('s_cselect_b32 s%d, s%d, s%d' % (SRD_IN + 1, P_WR + 1, P_WI + 1))
    A('s_and_b32 s%d, s%d, 0xffff' % (SRD_IN + 1, SRD_IN + 1))
    A('s_mov_b32 s%d, %d' % (SRD_IN + 2, 2048 * 642))
    A('s_mov_b32 s%d, 0x00020000' % (SRD_IN + 3))
    A('s_lshr_b32 s%d, s%d, 3' % (S_T, S_IDX))
    A('s_lshl_b32 s%d, s%d, 7' % (S_T, S_T))
    A('s_lshr_b32 s%d, s%d, 1' % (S_T + 1, S_WV))
    A('s_lshl_b32 s%d, s%d, 6' % (S_T + 1, S_T + 1))
    A('s_add_u32 s%d, s%d, s%d' % (S_T, S_T, S_T + 1))
    A('s_and_b32 s%d, s%d, 1' % (S_T + 1, S_IDX))
    A('s_lshl_b32 s%d, s%d, 5' % (S_T + 1, S_T + 1))
    A('s_add_u32 s%d, s%d, s%d' % (S_T, S_T, S_T + 1))
    A('s_bfe_u32 s%d, s%d, 0x20001' % (S_T + 1, S_IDX))
    A('s_add_u32 s%d, s%d, s%d' % (S_T, S_T, S_T + 1))
    A('s_mul_i32 s%d, s%d, 642' % (S_T, S_T))
    A('s_and_b32 s%d, s%d, 2' % (S_T + 2, S_T))
    A('s_and_b32 s%d, s%d, -4' % (S_T, S_T))
    A('v_lshlrev_b32 v%d, 4, v%d' % (VL, LANE))
    A('v_mov_b32 v%d, 0x%x' % (T0, OOB))
    A('v_cmp_gt_u32 vcc, 41, v%d' % LANE)
    A('v_cndmask_b32 v%d, v%d, v%d, vcc' % (VA, T0, VL))
    for ii in range(8):
        A('buffer_load_dwordx4 %s, v%d, s[%d:%d], s%d offen' % (v(DT + 4 * ii, 4), VA, SRD_IN, SRD_IN + 3, S_T))
        if ii < 7:
            A('s_add_u32 s%d, s%d, %d' % (S_T, S_T, 4 * 642))
    A('s_mul_i32 s%d, s%d, %d' % (S_T, S_WV, 8 * RS))
    A('v_add_u32 v%d, s%d, v%d' % (VL, S_T, VL))
    A('s_mov_b64 s[%d:%d], exec' % (S_T + 4, S_T + 5))
    A('s_mov_b64 exec, vcc')
    for ii in range(8):
        A('ds_write_b128 v%d, %s offset:%d' % (VL, v(DT + 4 * ii, 4), ii * RS))
    A('s_mov_b64 exec, s[%d:%d]' % (S_T + 4, S_T + 5))
    A('v_and_b32 v%d, 7, v0' % T0)
    A('v_mul_u32_u24 v%d, %d, v%d' % (VL, RS, T0))
    A('v_add_u32 v%d, s%d, v%d' % (VL, S_T + 2, VL))
    A('v_lshrrev_b32 v%d, 3, v0' % T1)
    A('v_lshlrev_b32 v%d, 14, v%d' % (VS, T1))
    A('v_lshl_add_u32 v%d, v%d, 4, v%d' % (VS, T0, VS))
    A('s_lshl_b32 s%d, s%d, 7' % (S_T, S_IDX))
    A('s_add_u32 s%d, s%d, 0x%x' % (S_T, S_T, OFF['WT']))
    A('v_bfe_u32 v%d, v0, 3, 1' % T2)
    A('v_mul_u32_u24 v%d, 160, v%d' % (T2, T2))
    A('v_bfe_u32 v%d, v0, 4, 2' % T3)
    A('v_mad_u32_u24 v%d, v%d, 40, v%d' % (T2, T3, T2))
    A('v_add_u32 v%d, s%d, v%d' % (T2, S_WV, T2))
    A.wait(lg=0)
    A('s_barrier')
    EA, EB = R(), R()
    for it in range(5):
        if it < 2:
            A('v_add_u32 v%d, %d, v%d' % (T0, 4 * it, T2))
            A('v_lshl_add_u32 v%d, v%d, 1, v%d' % (EA, T0, VL))
            A('v_add_u32 v%d, 40, v%d' % (EB, EA))
            if it == 0:
                A('v_cmp_gt_u32 vcc, 8, v0')
                A('v_add_u32 v%d, 640, v%d' % (T0, VL))
                A('v_cndmask_b32 v%d, v%d, v%d, vcc' % (EA, EA, T0))
        else:
            A('v_sub_u32 v%d, %d, v%d' % (T0, 330 - 4 * it, T2))
            A('v_lshl_add_u32 v%d, v%d, 1, v%d' % (EA, T0, VL))
            A('v_add_u32 v%d, -40, v%d' % (EB, EA))
            if it == 2:
                A('s_cmp_eq_u32 s%d, 3' % S_WV)
                A('s_cbranch_scc1 K1_wt_hi')
                st = A.save()
                A('v_add_u32 v%d, %d, v%d' % (T0, 4 * it, T2))
                A('v_lshl_add_u32 v%d, v%d, 1, v%d' % (EA, T0, VL))
                A('v_add_u32 v%d, 40, v%d' % (EB, EA))
                A.label('K1_wt_hi')
                A.merge(st, A.save())
        o = DT + 8 * it
        for h in range(2):
            for e, ad in ((0, EA), (1, EB)):
                A('ds_read_u16 v%d, v%d offset:%d' % (o + 2 * h + e, ad, h * 16 * RS))
                A('ds_read_u16 v%d, v%d offset:%d' % (o + 4 + 2 * h + e, ad, h * 16 * RS + 8 * RS))
    for it in range(5):
        o = DT + 8 * it
        for i in range(4):
            A('v_lshl_or_b32 v%d, v%d, 16, v%d' % (o + i, o + 4 + i, o + i))
        A('buffer_store_dwordx4 %s, v%d, s[%d:%d], s%d offen' % (v(o, 4), VS, SRD_WS, SRD_WS + 3, S_T))
        if it < 4:
            A('s_add_u32 s%d, s%d, %d' % (S_T, S_T, 32 * 16384))
    fin()

    A.label('K1_misc')
    A.restore(st_top)
    A('s_cmp_ge_u32 s2, %d' % B_QF)
    A('s_cbranch_scc1 K1_qf')
    R = Regs(8)
    DT = R(32, 4)
    OT = R(32, 4)
    VA, VLO, VHI = R(), R(), R()
    srd(A, SRD_IN, P_W2, WB)
    A('s_sub_u32 s%d, s2, %d' % (S_IDX, B_W2T))
    A('s_lshl_b32 s%d, s%d, 8' % (S_IDX, S_IDX))
    A('v_add_u32 v%d, s%d, v0' % (T0, S_IDX))
    A('v_mul_u32_u24 v%d, 52429, v%d' % (T1, T0))
    A('v_lshrrev_b32 v%d, 22, v%d' % (T1, T1))
    A('v_mul_u32_u24 v%d, 80, v%d' % (T2, T1))
    A('v_sub_u32 v%d, v%d, v%d' % (T2, T0, T2))
    A('v_mul_u32_u24 v%d, %d, v%d' % (VA, 8 * 1280, T1))
    A('v_lshl_add_u32 v%d, v%d, 4, v%d' % (VA, T2, VA))
    A('s_mov_b32 s%d, 3840' % S_T)
    A('s_mov_b32 s%d, 7680' % (S_T + 1))
    for i in range(8):
        so = '0' if i < 3 else 's%d' % (S_T + i // 3 - 1)
        A('buffer_load_dwordx4 %s, v%d, s[%d:%d], %s offen offset:%d' %
          (v(DT + 4 * i, 4), VA, SRD_IN, SRD_IN + 3, so, (i % 3) * 1280))
    A('v_mul_u32_u24 v%d, 205, v%d' % (T3, T2))
    A('v_lshrrev_b32 v%d, 11, v%d' % (T3, T3))
    A('v_mul_u32_u24 v%d, 10, v%d' % (T4, T3))
    A('v_sub_u32 v%d, v%d, v%d' % (T4, T2, T4))
    A('v_mul_u32_u24 v%d, %d, v%d' % (VLO, 4 * W2S_W, T3))
    A('v_lshrrev_b32 v%d, 2, v%d' % (T3, T1))
    A('v_mul_u32_u24 v%d, 74, v%d' % (T5, T3))
    A('v_lshrrev_b32 v%d, 10, v%d' % (T5, T5))
    A('v_mul_u32_u24 v%d, 25600, v%d' % (T5, T5))
    A('v_mul_u32_u24 v%d, 5120, v%d' % (T3, T3))
    A('v_add3_u32 v%d, v%d, v%d, v%d' % (VLO, VLO, T3, T5))
    A('v_and_b32 v%d, 3, v%d' % (T3, T1))
    A('v_lshl_add_u32 v%d, v%d, 8, v%d' % (VLO, T3, VLO))
    A('v_lshrrev_b32 v%d, 2, v%d' % (T3, T4))
    A('v_lshl_add_u32 v%d, v%d, 11, v%d' % (VLO, T3, VLO))
    A('v_and_b32 v%d, 3, v%d' % (T3, T4))
    A('v_cmp_gt_u32 vcc, 8, v%d' % T4)
    A('v_lshlrev_b32 v%d, 6, v%d' % (T5, T3))
    A('v_lshlrev_b32 v%d, 7, v%d' % (T3, T3))
    A('v_cndmask_b32 v%d, v%d, v%d, vcc' % (T3, T3, T5))
    A('v_add_u32 v%d, v%d, v%d' % (VLO, VLO, T3))
    A('v_mov_b32 v%d, 1024' % T5)
    A('v_cndmask_b32 v%d, 64, v%d, vcc' % (T3, T5))
    A('v_cmp_gt_u32 vcc, 216, v%d' % T1)
    A('v_mov_b32 v%d, 0x%x' % (T5, OOB))
    A('v_cndmask_b32 v%d, v%d, v%d, vcc' % (VLO, T5, VLO))
    A('v_add_u32 v%d, v%d, v%d' % (VHI, VLO, T3))
    A('s_mov_b32 s%d, 0x05040100' % (S_T + 2))
    A('s_mov_b32 s%d, 0x07060302' % (S_T + 3))
    A('s_mov_b32 s%d, 0x%x' % (S_T + 4, OFF['W2S'] + 25600))
    for i in range(8):
        for p in range(4):
            A('v_perm_b32 v%d, v%d, v%d, s%d' % (OT + 4 * i + p, DT + 4 * (2 * p + 1) + (i >> 1), DT + 4 * (2 * p) + (i >> 1), S_T + 2 + (i & 1)))
        A('buffer_store_dwordx4 %s, v%d, s[%d:%d], s%d offen offset:%d' %
          (v(OT + 4 * i, 4), VHI if i >= 4 else VLO, SRD_WS, SRD_WS + 3, S_T + 4, (i & 3) * 16))
    fin()

    A.label('K1_qf')
    A.restore(st_top)
    A('s_cmp_ge_u32 s2, %d' % B_Z)
    A('s_cbranch_scc1 K1_zero')
    R = Regs(8)
    KK = R(4)
    OT = R(20, 4)
    DP, DN, VS, CS, SN = R(), R(), R(), R(), R()
    A('s_sub_u32 s%d, s2, %d' % (S_IDX, B_QF))
    A('s_lshl_b32 s%d, s%d, 2' % (S_IDX, S_IDX))
    A('s_add_u32 s%d, s%d, s%d' % (S_IDX, S_IDX, S_WV))
    A('s_mul_i32 s%d, s%d, 205' % (S_T, S_IDX))
    A('s_lshr_b32 s%d, s%d, 12' % (S_T, S_T))
    A('s_mul_i32 s%d, s%d, 20' % (S_T + 1, S_T))
    A('s_sub_u32 s%d, s%d, s%d' % (S_T + 1, S_IDX, S_T + 1))
    A('s_add_u32 s%d, s%d, 310' % (S_T + 2, S_T + 1))
    A('s_cmp_ge_u32 s%d, 11' % (S_T + 1))
    A('s_cselect_b32 s%d, s%d, s%d' % (S_T + 2, S_T + 2, S_T + 1))
    A('s_cselect_b32 s%d, %s, %s' % (S_T + 3, fl(SC), '0'))
    A('s_cselect_b32 s%d, s%d, %s' % (S_T + 3, S_T + 3, fl(-SC)))
    A('v_lshrrev_b32 v%d, 4, v%d' % (T0, LANE))
    A('v_mul_u32_u24 v%d, 40, v%d' % (T0, T0))
    A('v_add_u32 v%d, s%d, v%d' % (T0, S_T + 2, T0))
    A('v_cvt_f32_u32 v%d, v%d' % (KK, T0))
    A('v_add_f32 v%d, %s, v%d' % (KK + 1, fl(20), KK))
    A('v_add_f32 v%d, %s, v%d' % (KK + 2, fl(160), KK))
    A('v_add_f32 v%d, %s, v%d' % (KK + 3, fl(180), KK))
    A('s_mul_i32 s%d, s%d, 80' % (S_T, S_T))
    A('v_and_b32 v%d, 15, v%d' % (T0, LANE))
    A('v_add_u32 v%d, s%d, v%d' % (T1, S_T, T0))
    A('v_cvt_f32_u32 v%d, v%d' % (DN, T1))
    A('v_and_b32 v%d, 12, v%d' % (T0, LANE))
    A('v_add_u32 v%d, v%d, v%d' % (T1, T1, T0))
    A('v_cvt_f32_u32 v%d, v%d' % (DP, T1))
    A('v_lshlrev_b32 v%d, 4, v%d' % (VS, LANE))
    A('s_mul_i32 s%d, s%d, 205' % (S_T, S_IDX))
    A('s_lshr_b32 s%d, s%d, 10' % (S_T, S_T))
    A('s_mul_i32 s%d, s%d, %d' % (S_T, S_T, W2S_W - 25600))
    A('s_mul_i32 s%d, s%d, 5120' % (S_T + 4, S_IDX))
    A('s_add_u32 s%d, s%d, s%d' % (S_T, S_T, S_T + 4))
    A('s_add_u32 s%d, s%d, 0x%x' % (S_T, S_T, OFF['W2S']))
    A('s_add_u32 s%d, s%d, 4096' % (S_T + 4, S_T))
    hb = f2u(math.sqrt(1.0 / 640))
    hb = (hb + 0x7fff + ((hb >> 16) & 1)) >> 16
    A('v_and_b32 v%d, 1, v%d' % (T0, LANE))
    A('v_lshlrev_b32 v%d, 31, v%d' % (T0, T0))
    A('v_or_b32 v%d, 0x%x, v%d' % (T5, hb * 0x10001, T0))
    A('s_cmp_eq_u32 s%d, 0' % (S_T + 1))
    A('s_cselect_b32 s%d, 16, 0' % (S_T + 5))
    A('v_cmp_gt_u32 vcc, s%d, v%d' % (S_T + 5, LANE))
    for ct in range(5):
        dof = 64 if ct == 4 else 32 * (ct >> 1) + 4 * (ct & 1)
        A('v_add_f32 v%d, %s, v%d' % (T4, fl(dof), DN if ct == 4 else DP))
        for i in range(4):
            A('v_mul_f32 v%d, v%d, v%d' % (T0, T4, KK + i))
            A('v_mul_f32 v%d, %s, v%d' % (T1, fl(1.0 / 640), T0))
            A('v_floor_f32 v%d, v%d' % (T1, T1))
            A('v_fmamk_f32 v%d, v%d, %s, v%d' % (T0, T1, fl(-640), T0))
            A('v_mul_f32 v%d, %s, v%d' % (T0, fl(1.0 / 640), T0))
            A('v_cos_f32 v%d, v%d' % (CS, T0))
            A('v_sin_f32 v%d, v%d' % (SN, T0))
            A('v_mul_f32 v%d, %s, v%d' % (CS, fl(SC), CS))
            A('v_mul_f32 v%d, s%d, v%d' % (SN, S_T + 3, SN))
            cvt(A, OT + 4 * ct + i, CS, SN)
        A('v_cndmask_b32 v%d, v%d, v%d, vcc' % (OT + 4 * ct, OT + 4 * ct, T5))
        A('buffer_store_dwordx4 %s, v%d, s[%d:%d], s%d offen offset:%d' %
          (v(OT + 4 * ct, 4), VS, SRD_WS, SRD_WS + 3, S_T + 4 if ct == 4 else S_T, (ct & 3) * 1024))
    fin()

    A.label('K1_zero')
    A.restore(st_top)
    for i in range(4):
        A('v_mov_b32 v%d, -1' % (8 + i))
    A('s_sub_u32 s%d, s2, %d' % (S_IDX, B_Z))
    A('v_lshlrev_b32 v%d, 4, v0' % T0)
    per = FILL_BYTES // N_Z
    assert per * N_Z == FILL_BYTES and per % 4096 == 0
    A('s_mul_i32 s%d, s%d, %d' % (S_T, S_IDX, per))
    A('s_add_u32 s%d, s%d, 0x%x' % (S_T, S_T, OFF['FILL']))
    for i in range(getattr(A, 'nfill', None) if getattr(A, 'nfill', None) is not None else per // 4096):
        A('buffer_store_dwordx4 v[8:11], v%d, s[%d:%d], s%d offen%s' % (T0, SRD_WS, SRD_WS + 3, S_T, getattr(A, 'fillsc', '')))
        A('s_add_u32 s%d, s%d, 4096' % (S_T, S_T))
    fin()
    if getattr(A, 'ts', False):
        A.label('K1_fin')
        A.reset()
        stamp(A, 6)
        stamp_flush(A, 0, 's[%d:%d]' % (SRD_WS, SRD_WS + 3), S_WV, 7)
        A('s_endpgm')
    nv = (nv + 7) // 8 * 8
    return nv
```

```python
from common import *
from k1 import mfma16, cvt

XT = 0
RED = 81920
SQP = RED + 61440
MAIN_LDS = SQP + 1024
KG = 2.0 * (2.0 / 3.141592653589793) ** 0.5 * 1.4426950408889634

WA = [256 + 4 * i for i in range(40)]
WB_ = [192 + 4 * i for i in range(16)] + [256 + 160 + 4 * i for i in range(24)]


def mfma32(A, d, x, y, c):
    A('v_mfma_f32_32x32x16_bf16 %s, %s, %s, %s' % (r(d, 16), r(x, 4), r(y, 4), '0' if c is None else r(c, 16)))


class G1Regs:
    def __init__(self, base):
        R = Regs(base)
        self.ACC = R(32, 4)
        self.BR = R(32, 4)
        self.BIAS = R(16, 4)
        self.T = R(8, 2)
        self.O = R(8, 4)
        self.RHO = R(2)
        self.VXR, self.VH, self.VXW, self.SS0, self.SS1 = [R() for _ in range(5)]
        self.ST = R(80, 4)
        self.end = R.n
        self.SH = [self.ST + 4 * i for i in range(20)] + WA + WB_[16:26]


def g1_setup(A, M):
    A('s_lshr_b32 s%d, s%d, 1' % (M.S_A, M.S_N))
    A('s_mul_i32 s%d, s%d, 14' % (M.S_A, M.S_A))
    A('s_add_u32 s%d, s%d, s%d' % (M.S_A, M.S_A, M.S_WV))
    A('s_and_b32 s%d, s%d, 1' % (M.S_B, M.S_N))
    A('s_lshl_b32 s%d, s%d, 2' % (M.S_PA, M.S_B))
    A('s_add_u32 s%d, s%d, s%d' % (M.S_PA, M.S_PA, M.S_A))
    A('s_cmp_lt_u32 s%d, 6' % M.S_N)
    A('s_cselect_b32 s%d, 3, 2' % M.S_HASB)
    A('s_mul_i32 s%d, s%d, s%d' % (M.S_B, M.S_B, M.S_HASB))
    A('s_add_u32 s%d, s%d, s%d' % (M.S_PB, M.S_A, M.S_B))
    A('s_add_u32 s%d, s%d, 8' % (M.S_PB, M.S_PB))
    A('s_cmp_lt_u32 s%d, s%d' % (M.S_WV, M.S_HASB))
    A('s_cselect_b32 s%d, 1, 0' % M.S_HASB)


def g1_weight_addr(A, M):
    A('s_mul_i32 s%d, s%d, 40960' % (M.S_A, M.S_PA))
    A('v_add_u32 v%d, s%d, v%d' % (M.VWA, M.S_A, M.VL16))
    A('s_mul_i32 s%d, s%d, 40960' % (M.S_A, M.S_PB))
    A('s_cmp_eq_u32 s%d, 0' % M.S_HASB)
    A('s_cselect_b32 s%d, 0x%x, s%d' % (M.S_A, OOB, M.S_A))
    A('v_add_u32 v%d, s%d, v%d' % (M.VWB, M.S_A, M.VL16))


def g1_weight_loads(A, M):
    out = []
    for tile, homes in ((0, WA), (1, WB_)):
        for i in range(40):
            def f(i=i, tile=tile, homes=homes):
                if (i & 3) == 0:
                    A('s_mov_b32 s%d, 0x%x' % (M.S_W, OFF['W1F'] + 1024 * i))
                A('buffer_load_dwordx4 %s, v%d, %s, s%d offen offset:%d' % (r(homes[i], 4), M.VWB if tile else M.VWA, M.WS, M.S_W, (i & 3) * 1024))
            out.append(f)
    return out


def stream_load(A, M, i, home):
    A('s_mov_b32 s%d, 0x%x' % (M.S_W2, 1024 * (i & ~3)))
    A('buffer_load_dwordx4 %s, v%d, %s, s%d offen offset:%d' % (r(home, 4), M.VW2, M.WS, M.S_W2, (i & 3) * 1024))


def g1_bias_loads(A, M, G):
    T = G.T
    A('v_lshrrev_b32 v%d, 5, v%d' % (T, M.LANE))
    A('v_lshlrev_b32 v%d, 4, v%d' % (T, T))
    for tile in range(2):
        A('s_lshl_b32 s%d, s%d, 6' % (M.S_A, M.S_PB if tile else M.S_PA))
        A('v_add_u32 v%d, s%d, v%d' % (T + 1, M.S_A, T))
        for jj in range(2):
            A('buffer_load_dwordx4 %s, v%d, %s, 0 offen offset:%d' % (v(G.BIAS + 8 * tile + 4 * jj, 4), T + 1, M.B1, 32 * jj))


def g1_addr(A, M, G):
    T = G.T
    A('v_and_b32 v%d, 31, v0' % T)
    A('v_lshlrev_b32 v%d, 4, v%d' % (T, T))
    A('v_lshrrev_b32 v%d, 5, v0' % (T + 1))
    A('v_lshl_add_u32 v%d, v%d, 15, v%d' % (G.VH, T + 1, T))
    A('s_lshl_b32 s%d, s%d, 9' % (M.S_A, M.S_T))
    A('v_add_u32 v%d, s%d, v%d' % (G.VH, M.S_A, G.VH))
    A('v_lshl_add_u32 v%d, v%d, 10, v%d' % (G.VXW, T + 1, T))
    A('v_lshrrev_b32 v%d, 5, v%d' % (T + 1, M.LANE))
    A('v_lshl_add_u32 v%d, v%d, 10, v%d' % (G.VXR, T + 1, T))
    A('v_add_u32 v%d, s%d, v%d' % (M.VW2, M.S_STR, M.VL16))
    A('v_lshrrev_b32 v%d, 4, v%d' % (T, M.LANE))
    A('v_and_b32 v%d, 15, v%d' % (T + 1, M.LANE))
    A('v_lshlrev_b32 v%d, 4, v%d' % (T + 1, T + 1))
    A('v_lshl_add_u32 v%d, v%d, 10, v%d' % (M.VHR, T, T + 1))
    A('s_mul_i32 s%d, s%d, %d' % (M.S_A, M.S_WV, 14 * 4096))
    A('s_add_u32 s%d, s%d, s%d' % (M.S_A, M.S_A, M.S_H))
    A('v_add_u32 v%d, s%d, v%d' % (M.VHR, M.S_A, M.VHR))


def spin(A, M, dst, load, sleep, mask, want):
    l = A.newlabel('spin')
    A.wait(vm=0)
    A.label(l)
    A('s_sub_u32 s%d, s%d, 1' % (M.S_BUD, M.S_BUD))
    A('s_cbranch_scc1 %s_out' % l)
    load()
    A('v_and_b32 v%d, %s, v%d' % (dst, mask, dst))
    A('v_cmp_ne_u32 vcc, %s, v%d' % (want, dst))
    A('s_cbranch_vccz %s_ok' % l)
    A('s_sleep %d' % sleep)
    A('s_branch %s' % l)
    A.label(l + '_out')
    A('s_mov_b32 s%d, 0' % M.S_BUD)
    A.label(l + '_ok')


def g1_prespin(A, M, G):
    tg = 's%d' % M.S_XTAG
    spin(A, M, G.ST, lambda: A('buffer_load_dword v%d, v%d, %s, 0 offen sc1' % (G.ST, G.VH, M.WS)), 2, tg, tg)


def g1_stage(A, M, G):
    T = G.T
    MK = M.S_MK
    for it in range(10):
        A('s_mov_b32 s%d, 0' % (MK + it))
    A('s_mov_b32 s%d, 10' % M.S_C)
    A('v_cmp_gt_u32 vcc, 32, v0')
    A('v_mov_b32 v%d, 0xffff0000' % T)
    A('v_cndmask_b32 v%d, -1, v%d, vcc' % (T, T))
    A('v_add_u32 v%d, %d, v%d' % (T + 3, 5 * 8192, G.VXW))
    A('v_mov_b32 v%d, 0' % G.SS0)
    A('v_mov_b32 v%d, 0' % G.SS1)
    lr = A.newlabel('stage')
    A.label(lr)
    for it in range(10):
        ad = T + 6 + (it & 1)
        A('v_or_b32 v%d, s%d, v%d' % (ad, MK + it, G.VH))
        A('s_mov_b32 s%d, 0x%x' % (M.S_A, it * 262144))
        A('s_mov_b32 s%d, 0x%x' % (M.S_B, it * 262144 + 16384))
        A('buffer_load_dwordx4 %s, v%d, %s, s%d offen sc1' % (v(G.ST + 8 * it, 4), ad, M.WS, M.S_A))
        A('buffer_load_dwordx4 %s, v%d, %s, s%d offen sc1' % (v(G.ST + 8 * it + 4, 4), ad, M.WS, M.S_B))
    for it in range(10):
        s0 = G.ST + 8 * it
        ls = '%s_%d' % (lr, it)
        A('v_bitop3_b32 v%d, v%d, v%d, s%d bitop3:0x80' % (T + 4, s0, s0 + 4, M.S_XTAG))
        A('v_cmp_eq_u32 vcc, 0, v%d' % (T + 4))
        A('s_cmp_lg_u32 s%d, 0' % (MK + it))
        A('s_cbranch_scc1 %s' % ls)
        st1 = A.save()
        A('s_cbranch_vccnz %s' % ls)
        st2 = A.save()
        A('v_swap_b32 v%d, v%d' % (s0 + 2, s0 + 4))
        A('v_swap_b32 v%d, v%d' % (s0 + 3, s0 + 5))
        ad = G.VXW if it < 5 else T + 3
        for par in range(2):
            A('ds_write_b128 v%d, %s offset:%d' % (ad, v(s0 + 4 * par, 4), XT + (it % 5) * 8192 + 512 * par))
        A('s_mov_b32 s%d, 0x%x' % (MK + it, OOB))
        A('s_sub_u32 s%d, s%d, 1' % (M.S_C, M.S_C))
        for i in range(4):
            for par in range(2):
                acc = G.SS0 + par
                x = s0 + 4 * par + i
                if it == 0 and i == 0:
                    A('v_and_b32 v%d, v%d, v%d' % (T + 1 + par, T, x))
                    x = T + 1 + par
                A('v_dot2_f32_bf16 v%d, v%d, v%d, v%d' % (acc, x, x, acc))
        A.label(ls)
        A.merge(st1, st2, A.save())
    A('s_cmp_eq_u32 s%d, 0' % M.S_C)
    A('s_cbranch_scc1 %s_ok' % lr)
    st = A.save()
    A.wait(lg=0)
    A('s_sub_u32 s%d, s%d, 1' % (M.S_BUD, M.S_BUD))
    A('s_cbranch_scc0 %s' % lr)
    A('s_mov_b32 s%d, 0' % M.S_BUD)
    A.label(lr + '_ok')
    A.merge(st, A.save())
    A('v_permlane32_swap_b32 v%d, v%d' % (G.SS0, G.SS1))
    A('v_add_f32 v%d, v%d, v%d' % (G.SS0, G.SS0, G.SS1))
    A('s_lshl_b32 s%d, s%d, 2' % (M.S_A, M.S_WV))
    A('v_lshlrev_b32 v%d, 4, v%d' % (T, M.LANE))
    A('v_add_u32 v%d, s%d, v%d' % (T, M.S_A, T))
    A('v_add_u32 v%d, %d, v%d' % (T, SQP, T))
    A('ds_write_b32 v%d, v%d' % (T, G.SS0))
    A.wait(lg=0)
    A('s_barrier')


def g1_rho(A, M, G):
    T, O = G.T, G.O
    L = []
    L.append(lambda: A('v_and_b32 v%d, 31, v%d' % (T, M.LANE)))
    L.append(lambda: A('v_lshlrev_b32 v%d, 4, v%d' % (T, T)))
    L.append(lambda: A('v_add_u32 v%d, %d, v%d' % (T, SQP, T)))
    for par in range(2):
        L.append(lambda par=par: A('ds_read_b128 %s, v%d offset:%d' % (v(O + 4 * par, 4), T, 512 * par)))
    L.append(lambda: A('v_mov_b32 v%d, v%d' % (G.VH, G.VXR)))
    L.append(lambda: A('v_mov_b32 v%d, %s' % (T + 1, fl(1e-5))))
    L.append(None)
    L.append(None)
    for par in range(2):
        o = O + 4 * par
        for txt in ('v_add_f32 v%d, v%d, v%d' % (o, o, o + 1),
                    'v_add_f32 v%d, v%d, v%d' % (o + 2, o + 2, o + 3),
                    'v_add_f32 v%d, v%d, v%d' % (o, o, o + 2),
                    'v_mul_f32 v%d, %s, v%d' % (o, fl(1.0 / 640), o),
                    'v_add_f32 v%d, v%d, v%d' % (o + 1, o, T + 1),
                    'v_rsq_f32 v%d, v%d' % (o + 1, o + 1),
                    'v_mul_f32 v%d, v%d, v%d' % (o, o, o + 1),
                    'v_fma_f32 v%d, v%d, v%d, v%d' % (o, o, o + 1, T + 1),
                    'v_rsq_f32 v%d, v%d' % (o, o),
                    'v_mul_f32 v%d, v%d, v%d' % (G.RHO + par, o, o + 1)):
            L.append(lambda txt=txt: A(txt))
    return L


def g1_epilogue(A, M, G, unit):
    tile, half = unit >> 1, unit & 1
    acc = G.ACC + 16 * (unit & 1)
    T, O = G.T, G.O
    L = []
    add = lambda txt: L.append(lambda txt=txt: A(txt))
    for pr in range(8):
        bsrc = G.BIAS + 8 * tile + pr
        for h in range(2):
            x, tt = acc + 2 * pr + h, T + 4 * h
            add(('v_and_b32 v%d, 0xffff0000, v%d' if h else 'v_lshlrev_b32 v%d, 16, v%d') % (tt, bsrc))
            add('v_fma_f32 v%d, v%d, v%d, v%d' % (x, x, G.RHO + half, tt))
            add('v_mul_f32 v%d, v%d, v%d' % (tt, x, x))
            add('v_fmaak_f32 v%d, v%d, v%d, %s' % (tt, G.SS0, tt, fl(-KG)))
            add('v_mul_f32 v%d, v%d, v%d' % (tt, tt, x))
            add('v_exp_f32 v%d, v%d' % (tt, tt))
        for h in range(2):
            tt = T + 4 * h
            add('v_add_f32 v%d, 1.0, v%d' % (tt, tt))
            add('v_rcp_f32 v%d, v%d' % (tt, tt))
        for h in range(2):
            x, tt = acc + 2 * pr + h, T + 4 * h
            add('v_mul_f32 v%d, v%d, v%d' % (x, x, tt))
        if pr & 3 == 0:
            add('v_add_u32 v%d, s%d, v%d' % (acc + 2 * pr, M.S_TADD, acc + 2 * pr))
            add('v_and_or_b32 v%d, v%d, v%d, s%d' % (acc + 2 * pr, acc + 2 * pr, M.VM, M.S_TOR))
        add('v_cvt_pk_bf16_f32 v%d, v%d, v%d' % (O + pr, acc + 2 * pr, acc + 2 * pr + 1))
        if pr & 3 == 3:
            jj = pr >> 2
            add('buffer_store_dwordx4 %s, v%d, %s, s%d offen offset:%d sc1' % (v(O + 4 * jj, 4), G.VH, M.WS, M.S_HT + tile, 2048 * jj + 512 * half))
    return L


def drain(L, n=None):
    k = 0
    while L and (n is None or k < n):
        f = L.pop(0)
        if f is not None:
            f()
        k += 1


def h_load1(A, M, g, rt, dst):
    A('s_mov_b32 s%d, 0x%x' % (M.S_A, 4096 * g))
    A('buffer_load_dwordx4 %s, v%d, %s, s%d offen offset:%d sc1' % (r(dst + 4 * rt, 4), M.VHR, M.WS, M.S_A, 256 * rt))


def h_load(A, M, g, dst):
    A('s_mov_b32 s%d, 0x%x' % (M.S_A, 4096 * g))
    for rt in range(4):
        A('buffer_load_dwordx4 %s, v%d, %s, s%d offen offset:%d sc1' % (r(dst + 4 * rt, 4), M.VHR, M.WS, M.S_A, 256 * rt))


H_FIRST = [192 + 16 * i for i in range(4)]


class Pacer:
    def __init__(self, items, pace):
        self.q, self.pace, self.t, self.next = list(items), pace, 0, 0

    def tick(self, cycles, pos):
        self.t += cycles
        while self.q and self.t >= self.next and self.q[0][0] <= pos:
            self.q.pop(0)[1]()
            self.next = max(self.next, self.t - self.pace) + self.pace

    def flush(self):
        while self.q:
            self.q.pop(0)[1]()


def g1_body(A, M, G, o):
    DEPTH = 6
    A('v_mov_b32 v%d, %s' % (G.SS0, fl(-KG * 0.044715)))
    for tile in range(2):
        A('s_lshl_b32 s%d, s%d, 12' % (M.S_HT + tile, M.S_PB if tile else M.S_PA))
        A('s_add_u32 s%d, s%d, s%d' % (M.S_HT + tile, M.S_HT + tile, M.S_H))
    A('v_add_u32 v%d, 40960, v%d' % (G.VXW, G.VXR))
    ready = lambda i: 0 if i < 20 else (20 + i if i < 60 else 76 + i)
    items = [(ready(i), lambda i=i: stream_load(A, M, i, G.SH[i])) for i in range(o['nf'])]
    hitems = [(max(o['h_at'], 120 + 4 * g + rt), lambda g=g, rt=rt: h_load1(A, M, g, rt, H_FIRST[g])) for g in range(4) for rt in range(4)]
    P = Pacer(items + hitems, o['pace'])

    def rd(i):
        u, ks = divmod(i, 40)
        off = ks * 2048 + 512 * (u & 1)
        ad = G.VXR if off < 65536 else G.VXW
        A('ds_read_b128 %s, v%d offset:%d' % (v(G.BR + 4 * (i % 8), 4), ad, XT + (off if off < 65536 else off - 40960)))

    def unit(u, fill):
        homes = WB_ if u >> 1 else WA
        acc = G.ACC + 16 * (u & 1)
        for ks in range(40):
            i = 40 * u + ks
            mfma32(A, acc, homes[ks], G.BR + 4 * (i % 8), None if ks == 0 else acc)
            if i + DEPTH < 160:
                rd(i + DEPTH)
            if ks >= 1:
                drain(fill, 4)
            P.tick(37, i)
        drain(fill)

    def tail(L, P_):
        while L:
            drain(L, 1)
            P_.tick(5, 999)
    for i in range(DEPTH):
        rd(i)
    unit(0, g1_rho(A, M, G))
    stamp(A, 4)
    unit(1, g1_epilogue(A, M, G, 0))
    stamp(A, 5)
    lb, le = A.newlabel('G1_one'), A.newlabel('G1_end')
    A('s_cmp_eq_u32 s%d, 0' % M.S_HASB)
    A('s_cbranch_scc1 %s' % lb)
    st = A.save()
    rest = [x for x in P.q if x not in hitems]
    unit(2, g1_epilogue(A, M, G, 1))
    stamp(A, 6)
    unit(3, g1_epilogue(A, M, G, 2))
    stamp(A, 7)
    tail(g1_epilogue(A, M, G, 3), P)
    P.flush()
    A('s_branch %s' % le)
    st2 = A.save()
    A.label(lb)
    A.restore(st)
    drain(g1_epilogue(A, M, G, 1))
    for x in rest:
        x[1]()
        A('s_sleep 1')
    A('s_mov_b32 s%d, 0x%x' % (M.S_A, 4096 * 3))
    spin(A, M, H_FIRST[0], lambda: A('buffer_load_dword v%d, v%d, %s, s%d offen offset:768 sc1' % (H_FIRST[0], M.VHR, M.WS, M.S_A)), 2, '1', 's%d' % M.S_LAYER)
    for x in hitems:
        x[1]()
    A.label(le)
    A.merge(st2, A.save())


class G2Regs:
    def __init__(self):
        self.ACC = 8
        self.BI = 88
        self.VL, self.VQ, self.VO, self.VS = 108, 109, 110, 111
        self.T = 192


def g2_bias_loads(A, M, G2, final):
    T = M.VWA
    A('v_lshrrev_b32 v%d, 4, v%d' % (T, M.LANE))
    if final:
        A('v_lshlrev_b32 v%d, 4, v%d' % (T + 1, T))
        A('v_lshlrev_b32 v%d, 3, v%d' % (T, T))
        A('s_mul_i32 s%d, s%d, 160' % (M.S_A, M.S_N))
        for u in range(2):
            A('buffer_load_dwordx4 %s, v%d, %s, s%d offen offset:%d' % (v(G2.BI + 4 * u, 4), T + 1, M.B2, M.S_A, 64 * u))
        A('buffer_load_dwordx2 %s, v%d, %s, s%d offen offset:128' % (v(G2.BI + 8, 2), T, M.B2, M.S_A))
    else:
        A('v_lshlrev_b32 v%d, 4, v%d' % (T, T))
        A('s_mul_i32 s%d, s%d, 320' % (M.S_A, M.S_N))
        A('s_add_u32 s%d, s%d, 0x%x' % (M.S_A, M.S_A, OFF['B2F']))
        for ct in range(5):
            A('buffer_load_dwordx4 %s, v%d, %s, s%d offen offset:%d' % (v(G2.BI + 4 * ct, 4), T, M.WS, M.S_A, 64 * ct))


def g2_main(A, M, G, G2, final, o):
    tile = lambda ct, rt: G2.ACC + 4 * (4 * ct + rt)
    T0, T1 = M.VWA, M.VWB
    started = set()
    nf = o['nf']

    def mm(ct, rt, a_, b_):
        d = tile(ct, rt)
        mfma16(A, d, a_, b_, d if d in started else None)
        started.add(d)
    if final:
        QB = [256 + 200, 256 + 216]
        left = [(256 + 232 + 4 * i, -999) for i in range(6)] + [(x, -1) for x in G.SH[20:25]] + [(QB[0] + 4 * i, -1) for i in range(8)] + [(x, -61) for x in G.SH[0:6]]
        left.sort(key=lambda x: x[1])
        homes = [(x, -999) for x in G.SH] + left
        slots = [(G.ST + 32, -41), (G.ST + 48, -21), (G.ST + 64, -21)]
        k0 = 25
    else:
        homes = [(x, -999) for x in G.SH]
        slots = [(256 + 200 + 16 * i, -999) for i in range(3)] + [(G.ST + 16 * i, 20 * (0, 1, 2, 3, 3)[i] + 19) for i in range(5)]
        k0 = 0
    WF = [x[0] for x in homes[k0:]]
    plan = list(H_FIRST)
    hrdy = [-999] * 4
    free = slots + [(H_FIRST[g], 20 * g + 19) for g in range(4)]
    for g in range(4, 14):
        free.sort(key=lambda x: (x[1], x[0]))
        vg = [x for x in free if x[0] < 256 and g >= 8 and x[1] <= o['late']]
        reg, ft = vg[0] if vg else free[0]
        free.remove((reg, ft))
        plan.append(reg)
        hrdy.append(max(ft, o['late'] if g >= 8 else -999))
        free.append((reg, 20 * g + 19))
    issued = set(range(4))

    def hl(g, rt):
        issued.add(g)
        h_load1(A, M, g, rt, plan[g])
    ent = [((i - k0) // 5 - 0.5, homes[i][1], lambda i=i: stream_load(A, M, i, homes[i][0])) for i in range(nf, len(homes))]
    ent += [(g, hrdy[g], lambda g=g, rt=rt: hl(g, rt)) for g in range(4, 14) for rt in range(4)]
    ent.sort(key=lambda x: x[0])
    clk = [0, 0]

    def tick(pos, force=None):
        clk[0] += 17
        while True:
            c = [x for x in ent if x[1] <= pos]
            if not c or not (clk[0] >= clk[1] or (force is not None and c[0][0] <= force)):
                break
            ent.remove(c[0])
            c[0][2]()
            clk[1] = max(clk[1], clk[0] - o['pace2']) + o['pace2']
        assert force is None or all(x[0] > force for x in ent)
    if final:
        A('v_lshrrev_b32 v%d, 4, v%d' % (T0, M.LANE))
        A('v_and_b32 v%d, 15, v%d' % (T1, M.LANE))
        A('v_lshlrev_b32 v%d, 4, v%d' % (T1, T1))
        A('v_lshl_add_u32 v%d, v%d, 10, v%d' % (G2.VQ, T0, T1))
        A('s_mul_i32 s%d, s%d, 20480' % (M.S_A, M.S_WV))
        A('v_add_u32 v%d, s%d, v%d' % (G2.VQ, M.S_A, G2.VQ))

        def qrd(ks):
            for rt in range(4):
                A('ds_read_b128 %s, v%d offset:%d' % (r(QB[ks % 2] + 4 * rt, 4), G2.VQ, XT + 4096 * ks + 256 * rt))
        qrd(0)
        qrd(1)
        for ks in range(5):
            for rt in range(4):
                for ct in range(5):
                    mm(ct, rt, G.SH[5 * ks + ct], QB[ks % 2] + 4 * rt)
                    tick(20 * ks + 5 * rt + ct - 100)
            if ks + 2 < 5:
                qrd(ks + 2)
    le = A.newlabel('G2_skip')
    op3, op2, cc = ('0x80', '0x80', 'eq') if final else ('0xfe', '0xa8', 'ne')

    def check_ops(g):
        b = plan[g]
        if b < 256:
            return ['v_bitop3_b32 v%d, v%d, v%d, v%d bitop3:%s' % (T0, b, b + 4, b + 8, op3),
                    'v_bitop3_b32 v%d, v%d, v%d, 1 bitop3:%s' % (T0, T0, b + 12, op2),
                    'v_cmp_%s_u32 vcc, 0, v%d' % (cc, T0)]
        T2 = G2.VL
        return ['v_accvgpr_read_b32 v%d, %s' % (T0, r(b)),
                'v_accvgpr_read_b32 v%d, %s' % (T1, r(b + 4)),
                'v_accvgpr_read_b32 v%d, %s' % (T2, r(b + 8)),
                'v_bitop3_b32 v%d, v%d, v%d, v%d bitop3:%s' % (T0, T0, T1, T2, op3),
                'v_accvgpr_read_b32 v%d, %s' % (T1, r(b + 12)),
                'v_bitop3_b32 v%d, v%d, v%d, 1 bitop3:%s' % (T0, T0, T1, op2),
                'v_cmp_%s_u32 vcc, 0, v%d' % (cc, T0)]

    def branch(g):
        lr = A.newlabel('G2_retry')
        A('s_cbranch_vccnz %s' % lr)
        A.label(lr + '_ok')
        inflight = sorted(k for k in issued if k >= g)

        def retry():
            A.label(lr)
            A.reset()
            A('s_sub_u32 s%d, s%d, 1' % (M.S_BUD, M.S_BUD))
            A('s_cbranch_scc1 %s_out' % lr)
            for k in inflight:
                h_load(A, M, k, plan[k])
            A.wait(vm=0)
            for x in check_ops(g):
                A(x)
            A('s_cbranch_vccnz %s' % lr)
            A('s_branch %s_ok' % lr)
            A.label(lr + '_out')
            A('s_mov_b32 s%d, 0' % M.S_BUD)
            A('s_branch %s_ok' % lr)
        A.deferred.append(retry)
    for x in check_ops(0):
        A(x)
    st_skip = None
    for ks in range(14):
        if ks == 12:
            assert not ent
            A('s_cmp_eq_u32 s%d, 3' % M.S_WV)
            A('s_cbranch_scc1 %s' % le)
            st_skip = A.save()
        branch(ks)
        chk = check_ops(ks + 1) if ks < 13 else []
        n = 0
        for rt in range(4):
            for ct in range(5):
                mm(ct, rt, WF[5 * ks + ct], plan[ks] + 4 * rt)
                n += 1
                if n >= 19 - len(chk) and chk:
                    A(chk.pop(0))
                tick(20 * ks + n - 1, (ks + o['ahead'] if ks < 11 else 99) if n == 10 else None)
                if ks == 11 and n == 11:
                    g2_bias_loads(A, M, G2, final)
    A.label(le)
    A.merge(st_skip, A.save())


def g2_finish(A, M, G2, final):
    T = G2.T
    tile = lambda ct, rt: G2.ACC + 4 * (4 * ct + rt)
    owner = (lambda ct, rt: rt) if final else (lambda ct, rt: (rt & 1) + (2 if ct >= 3 else 0))
    slot = lambda ct, rt, src: ((4 * ct + rt) * 3 + (src - owner(ct, rt) - 1) % 4) * 1024
    A.wait(vm=0)
    A('v_add_u32 v%d, %d, v%d' % (G2.VL, RED, M.VL16))
    labs = [A.newlabel('G2_red') for _ in range(4)]
    le = A.newlabel('G2_done')
    for w in range(1, 4):
        A('s_cmp_eq_u32 s%d, %d' % (M.S_WV, w))
        A('s_cbranch_scc1 %s' % labs[w])
    st = A.save()
    ends = []

    def addressing():
        A('v_lshrrev_b32 v%d, 4, v%d' % (T, M.LANE))
        A('v_and_b32 v%d, 15, v%d' % (T + 1, M.LANE))
        if final:
            A('v_mul_u32_u24 v%d, %d, v%d' % (G2.VO, 64 * 1280, T + 1))
            A('v_lshl_add_u32 v%d, v%d, 3, v%d' % (G2.VS, T, G2.VO))
            A('v_lshl_add_u32 v%d, v%d, 4, v%d' % (G2.VO, T, G2.VO))
            A('s_and_b32 s%d, s%d, 1' % (M.S_A, M.S_WV))
            A('s_lshl_b32 s%d, s%d, 5' % (M.S_A, M.S_A))
            A('s_lshr_b32 s%d, s%d, 1' % (M.S_B, M.S_WV))
            A('s_add_u32 s%d, s%d, s%d' % (M.S_A, M.S_A, M.S_B))
            A('s_lshl_b32 s%d, s%d, 5' % (M.S_A, M.S_A))
            A('s_add_u32 s%d, s%d, s%d' % (M.S_A, M.S_A, M.S_T))
            A('s_mul_i32 s%d, s%d, 1280' % (M.S_A, M.S_A))
            A('s_mul_i32 s%d, s%d, 160' % (M.S_B, M.S_N))
            A('s_add_u32 s%d, s%d, s%d' % (M.S_A, M.S_A, M.S_B))
        else:
            A('v_lshlrev_b32 v%d, 4, v%d' % (G2.VO, T + 1))
            A('v_lshrrev_b32 v%d, 1, v%d' % (T + 3, T))
            A('v_lshl_add_u32 v%d, v%d, 10, v%d' % (T + 3, T + 3, G2.VO))
            A('v_and_b32 v%d, 1, v%d' % (T + 2, T))
            A('v_lshl_add_u32 v%d, v%d, 3, v%d' % (T + 3, T + 2, T + 3))
            A('s_mul_i32 s%d, s%d, 10240' % (M.S_A, M.S_N))
            A('v_add_u32 v%d, s%d, v%d' % (T + 3, M.S_A, T + 3))
            A('v_lshl_add_u32 v%d, v%d, 14, v%d' % (G2.VO, T, G2.VO))
            A('s_mul_i32 s%d, s%d, %d' % (M.S_A, M.S_N, 20 * 16384))
            A('s_lshl_b32 s%d, s%d, 9' % (M.S_B, M.S_T))
            A('s_add_u32 s%d, s%d, s%d' % (M.S_A, M.S_A, M.S_B))
            A('v_and_b32 v%d, 7, v%d' % (T + 2, M.LANE))
            A('v_lshlrev_b32 v%d, 5, v%d' % (G2.VS, T + 2))
            A('v_bfe_u32 v%d, v%d, 3, 1' % (T + 2, M.LANE))
            A('v_lshl_add_u32 v%d, v%d, 3, v%d' % (G2.VS, T + 2, G2.VS))
            A('v_and_b32 v%d, 1, v%d' % (T + 2, T))
            A('v_lshl_add_u32 v%d, v%d, 2, v%d' % (G2.VS, T + 2, G2.VS))
            A('v_add_u32 v%d, %d, v%d' % (G2.VS, SQP, G2.VS))
            A('s_cmp_eq_u32 s%d, 0' % M.S_N)
            A('s_cselect_b32 s%d, 16, 0' % M.S_W2)
            A('v_cmp_gt_u32 vcc, s%d, v%d' % (M.S_W2, M.LANE))
            A('v_mov_b32 v%d, 0xffff0000' % (T + 2))
            A('v_cndmask_b32 v%d, -1, v%d, vcc' % (G2.VQ, T + 2))
    for w in range(4):
        A.label(labs[w])
        A.restore(st)
        for rt in range(4):
            for ct in range(5):
                if owner(ct, rt) != w:
                    A('ds_write_b128 v%d, %s offset:%d' % (G2.VL, v(tile(ct, rt), 4), slot(ct, rt, w)))
        addressing()
        own = [(ct, rt) for ct in range(5) for rt in range(4) if owner(ct, rt) == w]
        U = T + 16
        if final:
            for (ct, rt) in own:
                d = tile(ct, rt)
                for h in range(2):
                    src = G2.BI + 2 * ct + h
                    A('v_lshlrev_b32 v%d, 16, v%d' % (U, src))
                    A('v_and_b32 v%d, 0xffff0000, v%d' % (U + 1, src))
                    A('v_pk_add_f32 %s, %s, %s' % (v(d + 2 * h, 2), v(d + 2 * h, 2), v(U, 2)))
        else:
            for k, (ct, rt) in enumerate(own):
                A('ds_read_b64 %s, v%d offset:%d' % (v(U + 4 + 2 * k, 2), T + 3, XT + 2048 * ct + 256 * rt))
            for k, (ct, rt) in enumerate(own):
                d = tile(ct, rt)
                for h in range(2):
                    A('v_pk_add_f32 %s, %s, %s' % (v(d + 2 * h, 2), v(d + 2 * h, 2), v(G2.BI + 4 * ct + 2 * h, 2)))
            for k, (ct, rt) in enumerate(own):
                d = tile(ct, rt)
                for h in range(2):
                    src = U + 4 + 2 * k + h
                    A('v_lshlrev_b32 v%d, 16, v%d' % (U + 2 * h, src))
                    A('v_and_b32 v%d, 0xffff0000, v%d' % (U + 2 * h + 1, src))
                    A('v_pk_add_f32 %s, %s, %s' % (v(d + 2 * h, 2), v(d + 2 * h, 2), v(U + 2 * h, 2)))
        A.wait(lg=0)
        A('s_barrier')
        free = [tile(ct, rt) for ct in range(5) for rt in range(4) if owner(ct, rt) != w] + [T + 4 * i for i in range(4)]
        k = 0
        land = {}
        for (ct, rt) in own:
            for j in range(3):
                land[(ct, rt, j)] = free[k]
                A('ds_read_b128 %s, v%d offset:%d' % (v(free[k], 4), G2.VL, ((4 * ct + rt) * 3 + j) * 1024))
                k += 1
        for (ct, rt) in own:
            d = tile(ct, rt)
            p0, p1, p2 = [land[(ct, rt, j)] for j in range(3)]
            for h in range(2):
                A('v_pk_add_f32 %s, %s, %s' % (v(d + 2 * h, 2), v(d + 2 * h, 2), v(p0 + 2 * h, 2)))
                A('v_pk_add_f32 %s, %s, %s' % (v(p1 + 2 * h, 2), v(p1 + 2 * h, 2), v(p2 + 2 * h, 2)))
            for h in range(2):
                A('v_pk_add_f32 %s, %s, %s' % (v(d + 2 * h, 2), v(d + 2 * h, 2), v(p1 + 2 * h, 2)))
            if final:
                o = G2.BI + 2 * ct
                cvt(A, o, d, d + 1)
                cvt(A, o + 1, d + 2, d + 3)
                if ct in (1, 3):
                    A('buffer_store_dwordx4 %s, v%d, %s, s%d offen offset:%d' % (v(o - 2, 4), G2.VO, M.OUT, M.S_A, 32 * (ct - 1)))
                elif ct == 4:
                    A('buffer_store_dwordx2 %s, v%d, %s, s%d offen offset:128' % (v(o, 2), G2.VS, M.OUT, M.S_A))
            else:
                o = G2.BI + 4 * ct + 2 * (rt >> 1)
                if rt < 2:
                    for h in range(2):
                        A('v_add_u32 v%d, 0x10000, v%d' % (d + h, d + h))
                        A('v_and_b32 v%d, v%d, v%d' % (d + h, M.VM, d + h))
                cvt(A, o, d, d + 1)
                cvt(A, o + 1, d + 2, d + 3)
                if rt >= 2:
                    A('s_add_u32 s%d, s%d, %d' % (M.S_W, M.S_A, ct * 65536))
                    A('buffer_store_dwordx4 %s, v%d, %s, s%d offen offset:%d sc1' % (v(o - 2, 4), G2.VO, M.WS, M.S_W, 256 * (rt & 1)))
        if not final:
            cts = sorted(set(ct for ct, rt in own))
            q0, q1 = free[0], free[0] + 1
            for par, q in ((0, q0), (1, q1)):
                first = True
                for ct in cts:
                    for h in range(2):
                        x = G2.BI + 4 * ct + 2 * par + h
                        if ct == 0 and h == 0:
                            A('v_and_b32 v%d, v%d, v%d' % (free[0] + 2, G2.VQ, x))
                            x = free[0] + 2
                        A('v_dot2_f32_bf16 v%d, v%d, v%d, %s' % (q, x, x, '0' if first else 'v%d' % q))
                        first = False
            A('v_permlane16_swap_b32 v%d, v%d' % (q0, q1))
            A('v_add_f32 v%d, v%d, v%d' % (q0, q0, q1))
            A('v_mov_b32 v%d, v%d' % (q1, q0))
            A('v_permlane32_swap_b32 v%d, v%d' % (q0, q1))
            A('v_add_f32 v%d, v%d, v%d' % (q0, q0, q1))
            A('ds_write_b32 v%d, v%d offset:%d' % (G2.VS, q0, 256 * (w >> 1) + 16 * (w & 1)))
            if w == 3:
                A('v_lshlrev_b32 v%d, 5, v%d' % (T, M.LANE))
                A('v_and_b32 v%d, 0xff, v%d' % (T, T))
                A('v_add_u32 v%d, %d, v%d' % (T, SQP, T))
                A('v_mov_b32 v%d, 0x%x' % (T + 2, OOB))
                A('v_cmp_gt_u32 vcc, 8, v%d' % M.LANE)
                A('v_cndmask_b32 v%d, v%d, v%d, vcc' % (T + 1, T + 2, M.VL16))
                A('s_lshl_b32 s%d, s%d, 7' % (M.S_B, M.S_T))
                A('s_lshl_b32 s%d, s%d, 12' % (M.S_W, M.S_N))
                A('s_add_u32 s%d, s%d, s%d' % (M.S_B, M.S_B, M.S_W))
                A('s_add_u32 s%d, s%d, 0x%x' % (M.S_B, M.S_B, OFF['SSQ2']))
            A.wait(lg=0)
            A('s_barrier')
            if w == 3:
                for k in range(4):
                    A('ds_read_b128 %s, v%d offset:%d' % (v(U + 4 * k, 4), T, 256 * (k >> 1) + 16 * (k & 1)))
                for k in range(4):
                    A('v_pk_add_f32 %s, %s, %s' % (v(U + 2 * k, 2), v(U + 2 * k, 2), v(U + 8 + 2 * k, 2)))
                    cvt(A, T + 4 + k, U + 2 * k, U + 2 * k + 1)
                A('buffer_store_dwordx4 %s, v%d, %s, s%d offen sc1' % (v(T + 4, 4), T + 1, M.WS, M.S_B))
        if w < 3:
            A('s_branch %s' % le)
        ends.append(A.save())
    A.label(le)
    A.merge(*ends)
```

```python
from common import *
from col import *
from mlp import *


class M:
    LANE, VL16, VM, VWA, VWB, VW2, VHR = 1, 2, 3, 4, 5, 6, 7
    S_MK, S_STR = 4, 14
    S_WV, S_T, S_N, S_PA, S_HASB, S_PB = 26, 27, 28, 29, 30, 31
    WS, B1, OUT, B2 = 's[32:35]', 's[36:39]', 's[40:43]', 's[44:47]'
    S_A, S_B, S_C, S_W, S_W2, S_H, S_PSEL, S_BUD = 48, 49, 50, 51, 52, 53, 54, 55
    S_KEEP, S_HT = 56, 58
    S_XTAG, S_SSQ, S_LAYER = 60, 61, 63
    S_TADD, S_TOR = 15, 16
    ts = 1


def layer_params(A, layer):
    A('s_mov_b32 s%d, %d' % (M.S_LAYER, layer))
    A('s_mov_b32 s%d, 0x%x' % (M.S_SSQ, OFF['SSQ2' if layer else 'SSQ0']))
    A('s_mov_b32 s%d, 0x%x' % (M.S_XTAG, 0x10000 if layer else 1))
    A('s_mov_b32 s%d, 0x%x' % (M.S_TADD, 0 if layer else 0x10000))
    A('s_mov_b32 s%d, 0x%x' % (M.S_TOR, 0x10000 if layer else 0))
    if layer == 0:
        A('s_mul_i32 s%d, s%d, %d' % (M.S_H, M.S_T, 216 * 1024))
        A('s_add_u32 s%d, s%d, 0x%x' % (M.S_H, M.S_H, OFF['H']))
        A('s_mul_i32 s%d, s%d, %d' % (M.S_STR, M.S_N, 54 * 5120))
        A('s_mul_i32 s%d, s%d, %d' % (M.S_A, M.S_WV, 14 * 5120))
        A('s_add_u32 s%d, s%d, s%d' % (M.S_STR, M.S_STR, M.S_A))
        A('s_add_u32 s%d, s%d, 0x%x' % (M.S_STR, M.S_STR, OFF['W2F']))
    else:
        A('s_lshl_b32 s%d, s%d, 2' % (M.S_STR, M.S_N))
        A('s_add_u32 s%d, s%d, s%d' % (M.S_STR, M.S_STR, M.S_WV))
        A('s_mul_i32 s%d, s%d, %d' % (M.S_STR, M.S_STR, W2S_W))
        A('s_add_u32 s%d, s%d, 0x%x' % (M.S_STR, M.S_STR, OFF['W2S']))


def emit(A, launches, descs, opts):
    name = 'main_kernel'
    C, G, G2 = ColRegs(8), G1Regs(8), G2Regs()
    assert C.end <= 192 and G.end <= 192
    early = opts.get('early', 20)
    kernel_header(A, name)
    load_args(A)
    stamp_init(A)
    A('v_and_b32 v%d, 63, v0' % M.LANE)
    A('v_lshrrev_b32 v%d, 6, v0' % M.VM)
    A('v_readfirstlane_b32 s%d, v%d' % (M.S_WV, M.VM))
    A('v_lshlrev_b32 v%d, 4, v%d' % (M.VL16, M.LANE))
    A('s_cmp_ge_u32 s2, 256')
    A('s_cbranch_scc1 %s_exit' % name)
    A('s_and_b32 s%d, s2, 7' % M.S_T)
    A('s_lshl_b32 s%d, s%d, 2' % (M.S_T, M.S_T))
    A('s_bfe_u32 s%d, s2, 0x20003' % M.S_N)
    A('s_add_u32 s%d, s%d, s%d' % (M.S_T, M.S_T, M.S_N))
    A('s_lshr_b32 s%d, s2, 5' % M.S_N)
    srd(A, 32, P_WS, WS_USED)
    srd(A, 36, P_B1, F * 2)
    srd(A, 40, P_OUT, S * D * 2)
    srd(A, 44, P_B2, D * 2)
    A('s_mov_b32 s%d, 0x%x' % (M.S_BUD, 1 << 16))
    A('v_mov_b32 v%d, 0x%x' % (M.VM, TAGM))
    g1_setup(A, M)
    layer_params(A, 0)
    A.label('L_layer')
    stamp(A, 0)
    g1_weight_addr(A, M)
    A('s_cmp_ge_u32 s2, 160')
    A('s_cbranch_scc1 L_nocol')
    st = A.save()
    col_addr(A, M, C)
    A('s_cmp_lg_u32 s%d, 0' % M.S_LAYER)
    A('s_cbranch_scc1 L_late')
    col_load_x(A, M, C)
    col_load_q(A, M, C)
    A.label('L_late')
    col_load_w(A, M, C)
    wl = g1_weight_loads(A, M)
    A.bg, A.bg_every = wl[:early], opts.get('ev1', 8)
    col_tables(A, M, C)
    drain(A.bg)
    col_check(A, M, C, opts.get('csl', 1))
    stamp(A, 1)
    A.bg, A.bg_every = wl[early:], opts.get('ev2', 8)
    col_body(A, M, C)
    A.bg_every = 0
    drain(A.bg)
    stamp(A, 2)
    g1_addr(A, M, G)
    A('s_barrier')
    A('s_branch L_g1')
    st1 = A.save()
    A.label('L_nocol')
    A.restore(st)
    drain(g1_weight_loads(A, M))
    g1_addr(A, M, G)
    g1_prespin(A, M, G)
    stamp(A, 2)
    A.label('L_g1')
    A.merge(st1, A.save())
    g1_bias_loads(A, M, G)
    g1_stage(A, M, G)
    stamp(A, 3)
    o = dict(nf=56, h_at=140, pace=92, pace2=92, late=90, ahead=2)
    o.update(opts.get('o', {}))
    g1_body(A, M, G, o)
    stamp(A, 8)
    A('s_cmp_eq_u32 s%d, 1' % M.S_LAYER)
    A('s_cbranch_scc1 L_final')
    st = A.save()
    g2_main(A, M, G, G2, False, o)
    stamp(A, 9)
    g2_finish(A, M, G2, False)
    stamp(A, 10)
    stamp_save(A)
    layer_params(A, 1)
    A.wait(lg=0)
    A('s_branch L_layer')
    A.label('L_final')
    A.restore(st)
    o.update(late=0)
    o.update(opts.get('of', {}))
    g2_main(A, M, G, G2, True, o)
    stamp(A, 9)
    g2_finish(A, M, G2, True)
    stamp(A, 10)
    stamp_flush(A, 1, M.WS, M.S_WV, 11)
    A.label('%s_exit' % name)
    A('s_endpgm')
    for f in A.deferred:
        f()
    A.deferred = []
    launches.append('; @launch kernel=%s grid=(256,1,1) block=(256,1,1) lds=%d' % (name, MAIN_LDS))
    descs.append(kernel_desc(name, 512, 256))
```

```python
import sys
from common import *
import k1

NAME = 'interleave_layers__spectral_gfnet__mixer_channel_mlp__prompt'


def build(opts):
    A = Asm()
    A.ts = opts.get('ts', False)
    A.skip = opts.get('skip', ())
    A.nfill = opts.get('nfill')
    A.fillsc = opts.get('fillsc', '')
    launches, descs = [], []
    nv = k1.emit_k1(A, 'prep_kernel')
    launches.append('; @launch kernel=prep_kernel grid=(%d,1,1) block=(256,1,1) lds=%d' % (k1.K1_GRID, k1.K1_LDS))
    descs.append(kernel_desc('prep_kernel', nv, nv))
    if opts.get('main', True):
        import pm
        pm.emit(A, launches, descs, opts)
    head = ['; GFNet spectral filter + channel MLP, two interleaved layers, residual stream kept in the row-spectrum basis.']
    head += launches
    if A.ts:
        head += ['; tsoff=%d' % OFF['TS']]
    head += ['.amdgcn_target "amdgcn-amd-amdhsa--gfx950"', '.text']
    return '\n'.join(head) + '\n' + A.text() + '.section .rodata,"a"\n.p2align 6\n' + '.p2align 6\n'.join(descs)


if __name__ == '__main__':
    opts = {}
    out = 'cdna_kernels/%s.s' % NAME
    for x in sys.argv[1:]:
        k, _, val = x.partition('=')
        if k == 'out':
            out = val
        else:
            opts[k] = eval(val)
    t = build(opts)
    open(out, 'w').write(t)
    print('wrote', out, len(t), 'bytes')
```

```python
from common import *
from k1 import mfma16, cvt

E1, E2 = 0, 16384


class ColRegs:
    def __init__(self, base):
        R = Regs(base)
        self.B1 = R(8, 4)
        self.TWF = R(16, 2)
        self.FC = R(8, 4)
        self.FS = R(8, 4)
        self.FN = R(8, 4)
        self.TWI = R(16, 2)
        self.LA = R(8, 4)
        self.X = R(16, 4)
        self.W = R(16, 4)
        self.D = R(32, 4)
        self.D2 = R(32, 4)
        self.SQ = self.D2 + 16
        self.T = R(8, 2)
        self.VX, self.VW1, self.VR1, self.VW2, self.VR2, self.VSQ = [R() for _ in range(6)]
        self.VWT = self.T + 2
        self.end = R.n


def col_tables(A, M, C):
    T, LANE = C.T, M.LANE
    JF, GF, RF = T + 4, T + 5, T + 6
    CS, SN = C.D, C.D + 8
    A('v_and_b32 v%d, 15, v%d' % (T, LANE))
    A('v_lshlrev_b32 v%d, 2, v%d' % (T + 1, T))
    A('v_add_u32 v%d, s%d, v%d' % (T + 1, M.S_WV, T + 1))
    A('v_cvt_f32_ubyte0 v%d, v%d' % (JF, T + 1))
    A('v_lshrrev_b32 v%d, 4, v%d' % (T + 1, LANE))
    A('v_cvt_f32_ubyte0 v%d, v%d' % (GF, T + 1))
    A('v_mul_f32 v%d, v%d, v%d' % (T + 2, JF, GF))
    A('v_mul_f32 v%d, %s, v%d' % (T + 3, fl(4.0 / 64), T + 2))
    for i in range(4):
        A('v_fmamk_f32 v%d, v%d, %s, v%d' % (T, JF, fl(i / 64.0), T + 3))
        A('v_cos_f32 v%d, v%d' % (CS + i, T))
        A('v_sin_f32 v%d, v%d' % (SN + i, T))
    for i in range(4):
        cvt(A, C.B1 + i, CS + i, SN + i)
        cvt(A, C.B1 + 4 + i, SN + i, CS + i, True, False)
    A('v_mul_f32 v%d, %s, v%d' % (T + 3, fl(-8.0 / 2048), T + 2))
    for i in range(8):
        A('v_fmamk_f32 v%d, v%d, %s, v%d' % (T, JF, fl(-i / 2048.0), T + 3))
        A('v_cos_f32 v%d, v%d' % (C.TWF + i, T))
        A('v_sin_f32 v%d, v%d' % (C.TWF + 8 + i, T))
    A('v_and_b32 v%d, 15, v%d' % (T, LANE))
    A('v_and_b32 v%d, 12, v%d' % (T + 1, LANE))
    A('v_add_u32 v%d, v%d, v%d' % (T, T, T + 1))
    A('v_cvt_f32_ubyte0 v%d, v%d' % (RF, T))
    for i in range(2):
        if i:
            A('v_add_f32 v%d, 4.0, v%d' % (T + 7, RF))
        mm = T + 7 if i else RF
        A('v_mul_f32 v%d, v%d, v%d' % (T + 2, mm, GF))
        A('v_mul_f32 v%d, %s, v%d' % (T + 3, fl(0.25), T + 2))
        for j in range(8):
            A('v_fmamk_f32 v%d, v%d, %s, v%d' % (T, mm, fl(j / 32.0), T + 3))
            A('v_cos_f32 v%d, v%d' % (CS + j, T))
            A('v_sin_f32 v%d, v%d' % (SN + j, T))
        for j in range(4):
            cvt(A, C.FC + 4 * i + j, CS + 2 * j, CS + 2 * j + 1)
            cvt(A, C.FS + 4 * i + j, SN + 2 * j, SN + 2 * j + 1)
            cvt(A, C.FN + 4 * i + j, SN + 2 * j, SN + 2 * j + 1, True, True)
    A('v_cvt_f32_ubyte0 v%d, s%d' % (T, M.S_WV))
    A('v_fmamk_f32 v%d, v%d, %s, v%d' % (JF, GF, fl(16.0), T))
    for ib in range(2):
        mm = T + 7 if ib else RF
        A('v_mul_f32 v%d, v%d, v%d' % (T + 2, mm, JF))
        A('v_mul_f32 v%d, %s, v%d' % (T + 3, fl(1.0 / 2048), T + 2))
        for t in range(4):
            A('v_fmamk_f32 v%d, v%d, %s, v%d' % (T, mm, fl(4.0 * t / 2048), T + 3))
            A('v_cos_f32 v%d, v%d' % (C.TWI + 4 * ib + t, T))
            A('v_sin_f32 v%d, v%d' % (C.TWI + 8 + 4 * ib + t, T))
    A('v_bfe_u32 v%d, v%d, 1, 3' % (T, LANE))
    A('v_cvt_f32_ubyte0 v%d, v%d' % (RF, T))
    A('v_and_b32 v%d, 1, v%d' % (T, LANE))
    A('v_cvt_f32_ubyte0 v%d, v%d' % (T + 1, T))
    A('v_mul_f32 v%d, %s, v%d' % (T + 1, fl(-0.25), T + 1))
    for tau in range(2):
        if tau:
            A('v_add_f32 v%d, %s, v%d' % (RF, fl(8.0), RF))
        A('v_mul_f32 v%d, v%d, v%d' % (T + 2, RF, JF))
        A('v_fmamk_f32 v%d, v%d, %s, v%d' % (T + 3, T + 2, fl(1.0 / 64), T + 1))
        for t in range(4):
            A('v_fmamk_f32 v%d, v%d, %s, v%d' % (T, RF, fl(4.0 * t / 64), T + 3))
            A('v_cos_f32 v%d, v%d' % (CS + t, T))
            A('v_sin_f32 v%d, v%d' % (SN + t, T))
        for t in range(4):
            cvt(A, C.LA + 4 * tau + t, CS + t, SN + t, False, True)
    A('v_bfe_u32 v%d, v0, 1, 2' % T)
    A('v_bfe_u32 v%d, v0, 3, 2' % (T + 1))
    A('s_lshl_b32 s%d, s%d, 2' % (M.S_A, M.S_WV))
    A('v_or_b32 v%d, s%d, v%d' % (T + 1, M.S_A, T + 1))
    A('v_lshlrev_b32 v%d, 1, v%d' % (T + 2, T))
    A('v_xor_b32 v%d, v%d, v%d' % (T + 1, T + 1, T + 2))
    A('v_lshlrev_b32 v%d, 4, v%d' % (T + 1, T + 1))
    A('v_lshl_add_u32 v%d, v%d, 8, v%d' % (T + 1, T, T + 1))
    A('v_bfe_u32 v%d, v0, 5, 1' % T)
    A('v_lshl_add_u32 v%d, v%d, 10, v%d' % (T + 1, T, T + 1))
    A('v_and_b32 v%d, 1, v0' % T)
    A('v_lshl_add_u32 v%d, v%d, 3, v%d' % (C.VW1, T, T + 1))
    A('v_lshrrev_b32 v%d, 4, v%d' % (T, LANE))
    A('v_lshlrev_b32 v%d, 1, v%d' % (T + 1, T))
    A('v_xor_b32 v%d, v%d, v%d' % (T + 1, T + 1, LANE))
    A('v_lshlrev_b32 v%d, 4, v%d' % (T + 1, T + 1))
    A('s_lshl_b32 s%d, s%d, 12' % (M.S_A, M.S_WV))
    A('v_add_u32 v%d, s%d, v%d' % (C.VR1, M.S_A, T + 1))
    A('v_and_b32 v%d, 7, v%d' % (T + 1, LANE))
    A('v_xor_b32 v%d, v%d, v%d' % (T + 1, T + 1, T))
    A('v_lshlrev_b32 v%d, 4, v%d' % (T + 1, T + 1))
    A('v_and_b32 v%d, 15, v%d' % (T, LANE))
    A('v_and_b32 v%d, 12, v%d' % (T + 2, LANE))
    A('v_add_u32 v%d, v%d, v%d' % (T, T, T + 2))
    A('v_lshl_add_u32 v%d, v%d, 7, v%d' % (T + 1, T, T + 1))
    A('s_lshl_b32 s%d, s%d, 13' % (M.S_A, M.S_WV))
    A('v_add_u32 v%d, s%d, v%d' % (C.VW2, M.S_A, T + 1))
    A('v_bfe_u32 v%d, v0, 3, 2' % T)
    A('v_bfe_u32 v%d, v0, 6, 1' % (T + 1))
    A('v_lshl_add_u32 v%d, v%d, 2, v%d' % (T, T + 1, T))
    A('v_xor_b32 v%d, v0, v%d' % (T, T))
    A('v_lshlrev_b32 v%d, 4, v%d' % (C.VR2, T))
    A('s_cmp_eq_u32 s2, 0')
    A('s_cselect_b32 s%d, 0x0c0c0c0c, 0' % M.S_PSEL)
    A('s_cselect_b32 s%d, s%d, 0x01000c0c' % (M.S_PSEL, M.S_PSEL))
    A('s_cselect_b32 s%d, 0, 1.0' % M.S_KEEP)
    A('s_mov_b32 s%d, 1.0' % (M.S_KEEP + 1))


def col_addr(A, M, C):
    T = C.T
    A('v_lshrrev_b32 v%d, 3, v0' % T)
    A('v_and_b32 v%d, 7, v0' % (T + 1))
    A('v_lshlrev_b32 v%d, 4, v%d' % (T + 1, T + 1))
    A('v_lshl_add_u32 v%d, v%d, 9, v%d' % (C.VX, T, T + 1))
    A('v_lshrrev_b32 v%d, 1, v%d' % (C.VW1, C.VX))
    A('s_lshl_b32 s%d, s2, 14' % M.S_A)
    A('v_add_u32 v%d, s%d, v%d' % (C.VX, M.S_A, C.VX))
    A('v_lshlrev_b32 v%d, 4, v0' % C.VSQ)


def col_load_w(A, M, C):
    T = C.T
    A('v_lshrrev_b32 v%d, 4, v%d' % (T, M.LANE))
    A('v_and_b32 v%d, 15, v%d' % (T + 1, M.LANE))
    A('v_lshlrev_b32 v%d, 4, v%d' % (T + 1, T + 1))
    A('v_lshl_add_u32 v%d, v%d, 12, v%d' % (C.VWT, T, T + 1))
    A('s_lshl_b32 s%d, s2, 14' % M.S_A)
    A('s_lshl_b32 s%d, s%d, 8' % (M.S_B, M.S_WV))
    A('s_add_u32 s%d, s%d, s%d' % (M.S_A, M.S_A, M.S_B))
    A('s_add_u32 s%d, s%d, 0x%x' % (M.S_A, M.S_A, OFF['WT']))
    for i in range(4):
        A('buffer_load_dwordx4 %s, v%d, %s, s%d offen offset:%d' % (v(C.W + 4 * i, 4), C.VWT, M.WS, M.S_A, 1024 * i))


def col_load_x(A, M, C):
    for m in range(4):
        A('buffer_load_dwordx4 %s, v%d, %s, 0 offen offset:%d sc1' % (v(C.X + 4 * m, 4), C.VX, M.WS, 128 * m))


def col_load_q0(A, M, C):
    A('s_mov_b32 s%d, 0x%x' % (M.S_C, OFF['SSQ0']))
    for m in range(4):
        A('buffer_load_dwordx2 %s, v%d, %s, s%d offen offset:%d' % (v(C.D2 + 2 * m, 2), C.VW1, M.WS, M.S_C, 64 * m))


def col_load_q(A, M, C):
    for h in range(8):
        A('s_mov_b32 s%d, 0x%x' % (M.S_C, OFF['SSQ2'] + 4096 * h))
        A('buffer_load_dwordx4 %s, v%d, %s, s%d offen sc1' % (v(C.D2 + 4 * h, 4), C.VSQ, M.WS, M.S_C))


def col_check(A, M, C, sleep):
    T = C.T
    lc, lr = A.newlabel('col_chk'), A.newlabel('col_retry')
    ev, A.bg_every = A.bg_every, 0
    A('s_mov_b64 vcc, -1')
    A('s_mov_b64 s[%d:%d], -1' % (M.S_A, M.S_A + 1))
    A('s_mov_b32 s%d, %s' % (M.S_EPS, fl(1e-5 * 640)))
    A('s_cmp_lg_u32 s%d, 0' % M.S_LAYER)
    A('s_cbranch_scc1 %s_go' % lr)
    for i in range(8):
        A('v_add_f32 v%d, s%d, v%d' % (T + i, M.S_EPS, C.D2 + i))
    A('s_branch %s_sum' % lc)
    st0 = A.save()
    A.label(lc)
    A.reset()
    A('v_or3_b32 v%d, v%d, v%d, v%d' % (T, C.X, C.X + 4, C.X + 8))
    A('v_bitop3_b32 v%d, v%d, v%d, 1 bitop3:0xa8' % (T, T, C.X + 12))
    A('v_cmp_ne_u32 s[%d:%d], 0, v%d' % (M.S_A, M.S_A + 1, T))
    q = [C.D2 + 4 * i for i in range(8)]
    A('v_or3_b32 v%d, v%d, v%d, v%d' % (T, q[0], q[1], q[2]))
    A('v_or3_b32 v%d, v%d, v%d, v%d' % (T + 1, q[3], q[4], q[5]))
    A('v_or3_b32 v%d, v%d, v%d, v%d' % (T, T, q[6], q[7]))
    A('v_or_b32 v%d, v%d, v%d' % (T, T, T + 1))
    A('v_cmp_gt_i32 vcc, 0, v%d' % T)
    A('s_or_b64 s[%d:%d], vcc, s[%d:%d]' % (M.S_MK, M.S_MK + 1, M.S_A, M.S_A + 1))
    A('s_cbranch_scc1 %s' % lr)
    A.label(lc + '_ok')
    A('v_mov_b32 v%d, 0x3f80' % C.D)
    A('v_mov_b32 v%d, 1.0' % (C.D + 1))
    for h in range(8):
        for i in range(8):
            A('v_dot2_f32_bf16 v%d, v%d, v%d, %s' % (T + i, C.D2 + 4 * h + (i >> 1), C.D + (i & 1), 'v%d' % (T + i) if h else 's%d' % M.S_EPS))
    A.label(lc + '_sum')
    A.merge(st0, A.save())
    A.bg_every = ev

    def retry():
        A.label(lr)
        A.reset()
        A('s_sub_u32 s%d, s%d, 1' % (M.S_BUD, M.S_BUD))
        A('s_cbranch_scc1 %s_out' % lr)
        if sleep:
            A('s_sleep %d' % sleep)
        A.label(lr + '_go')
        A('s_cmp_eq_u64 s[%d:%d], 0' % (M.S_A, M.S_A + 1))
        A('s_cbranch_scc1 %s_q' % lr)
        col_load_x(A, M, C)
        A.label(lr + '_q')
        A('s_cbranch_vccz %s_w' % lr)
        col_load_q(A, M, C)
        A.label(lr + '_w')
        A.wait(vm=0)
        A('s_branch %s' % lc)
        A.label(lr + '_out')
        A('s_mov_b32 s%d, 0' % M.S_BUD)
        A('s_branch %s_ok' % lc)
    A.deferred.append(retry)


def cmul(A, ore, oim, re, im, wr, wi):
    A('v_mul_f32 v%d, v%d, v%d' % (ore, re, wr))
    A('v_mul_f32 v%d, v%d, v%d' % (oim, re, wi))
    A('v_fma_f32 v%d, -v%d, v%d, v%d' % (ore, im, wi, ore))
    A('v_fma_f32 v%d, v%d, v%d, v%d' % (oim, im, wr, oim))


def col_body(A, M, C):
    T, D, D2 = C.T, C.D, C.D2
    for i in range(8):
        A('v_mul_f32 v%d, %s, v%d' % (T + i, fl(2048.0 * 2048 / 640), T + i))
    for i in range(8):
        A('v_rsq_f32 v%d, v%d' % (C.SQ + i, T + i))
    U = D2
    for x in range(2):
        for e in range(2):
            Z = D + 16 * ((2 * x + e) & 1)
            for m in range(4):
                src = C.X + 4 * m + 2 * x + e
                if e == 0:
                    A('v_perm_b32 v%d, v%d, v%d, s%d' % (Z + 2 * m, src, src, M.S_PSEL))
                else:
                    A('v_lshlrev_b32 v%d, 16, v%d' % (Z + 2 * m, src))
                A('v_and_b32 v%d, 0xffff0000, v%d' % (Z + 2 * m + 1, src))
            sel = 'op_sel:[0,%d] op_sel_hi:[1,%d]' % (x, x)
            sel3 = 'op_sel:[0,%d,0] op_sel_hi:[1,%d,1]' % (x, x)
            P, Mi, Q, N = Z + 8, Z + 10, Z + 12, Z + 14
            for (m0, pp, mm) in ((0, P, Mi), (1, Q, N)):
                A('v_pk_mul_f32 %s, %s, %s %s' % (v(Z + 2 * m0, 2), v(Z + 2 * m0, 2), v(C.SQ + 2 * m0, 2), sel))
                A('v_pk_fma_f32 %s, %s, %s, %s %s' % (v(pp, 2), v(Z + 2 * m0 + 4, 2), v(C.SQ + 2 * m0 + 4, 2), v(Z + 2 * m0, 2), sel3))
                A('v_pk_fma_f32 %s, %s, %s, %s %s neg_lo:[1,0,0] neg_hi:[1,0,0]' % (v(mm, 2), v(Z + 2 * m0 + 4, 2), v(C.SQ + 2 * m0 + 4, 2), v(Z + 2 * m0, 2), sel3))
            A('v_pk_add_f32 %s, %s, %s' % (v(Z, 2), v(P, 2), v(Q, 2)))
            A('v_pk_add_f32 %s, %s, %s op_sel:[0,1] op_sel_hi:[1,0] neg_hi:[0,1]' % (v(Z + 2, 2), v(Mi, 2), v(N, 2)))
            A('v_pk_add_f32 %s, %s, %s neg_lo:[0,1] neg_hi:[0,1]' % (v(Z + 4, 2), v(P, 2), v(Q, 2)))
            A('v_pk_add_f32 %s, %s, %s op_sel:[0,1] op_sel_hi:[1,0] neg_lo:[0,1]' % (v(Z + 6, 2), v(Mi, 2), v(N, 2)))
            for w in range(4):
                cvt(A, U + 4 * w + 2 * e + x, Z + 2 * w, Z + 2 * w + 1)
    for w in range(4):
        for e in range(2):
            A('ds_write_b64 v%d, %s offset:%d' % (C.VW1, v(U + 4 * w + 2 * e, 2), E1 + (2 * w + e) * 2048))
    A.wait(lg=0)
    A('s_barrier')
    AF = D2 + 16
    for e in range(2):
        for i in range(2):
            A('ds_read_b128 %s, v%d offset:%d' % (v(AF + 8 * e + 4 * i, 4), C.VR1, E1 + (2 * e + i) * 1024))
    for e in range(2):
        for c in range(2):
            for i in range(2):
                mfma16(A, D + 16 * e + 8 * c + 4 * i, AF + 8 * e + 4 * i, C.B1 + 4 * c, None)

    def tw_fwd(e):
        for jj in range(4):
            for h in range(2):
                k = 2 * jj + h
                cmul(A, T + h, T + 2 + h, D + 16 * e + k, D + 16 * e + 8 + k, C.TWF + k, C.TWF + 8 + k)
            cvt(A, D + 16 * e + jj, T, T + 1)
            cvt(A, D + 16 * e + 8 + jj, T + 2, T + 3)

    def dft(e):
        br, bi = D + 16 * e, D + 16 * e + 8
        for i in range(2):
            mfma16(A, D2 + 16 * e + 4 * i, C.FC + 4 * i, br, None)
            mfma16(A, D2 + 16 * e + 8 + 4 * i, C.FN + 4 * i, br, None)
        for i in range(2):
            mfma16(A, D2 + 16 * e + 4 * i, C.FS + 4 * i, bi, D2 + 16 * e + 4 * i)
            mfma16(A, D2 + 16 * e + 8 + 4 * i, C.FC + 4 * i, bi, D2 + 16 * e + 8 + 4 * i)

    def filt(e):
        for jj in range(4):
            for h in range(2):
                k = 2 * jj + h
                src = C.W + 4 * jj + 2 * h + e
                A('v_lshlrev_b32 v%d, 16, v%d' % (T + 4, src))
                A('v_and_b32 v%d, 0xffff0000, v%d' % (T + 5, src))
                cmul(A, T + h, T + 2 + h, D2 + 16 * e + k, D2 + 16 * e + 8 + k, T + 4, T + 5)
            cvt(A, D2 + 16 * e + jj, T, T + 1)
            cvt(A, D2 + 16 * e + 8 + jj, T + 2, T + 3)

    def idft(e):
        ar, ai = D2 + 16 * e, D2 + 16 * e + 8
        for i in range(2):
            mfma16(A, D + 16 * e + 4 * i, ar, C.FC + 4 * i, None)
            mfma16(A, D + 16 * e + 8 + 4 * i, ar, C.FS + 4 * i, None)
        for i in range(2):
            mfma16(A, D + 16 * e + 4 * i, ai, C.FN + 4 * i, D + 16 * e + 4 * i)
            mfma16(A, D + 16 * e + 8 + 4 * i, ai, C.FC + 4 * i, D + 16 * e + 8 + 4 * i)

    def tw_inv(e):
        for k in range(8):
            o = T + 2 * (k & 1)
            cmul(A, o, o + 1, D + 16 * e + k, D + 16 * e + 8 + k, C.TWI + k, C.TWI + 8 + k)
            cvt(A, D + 16 * e + k, o, o + 1)

    def last(e):
        for ib in range(2):
            for tau in range(2):
                mfma16(A, D2 + 16 * e + 8 * ib + 4 * tau, C.LA + 4 * tau, D + 16 * e + 4 * ib, None)

    def put(e):
        for ib in range(2):
            for tau in range(2):
                A('ds_write_b128 v%d, %s offset:%d' % (T + 6 + tau, v(D2 + 16 * e + 8 * ib + 4 * tau, 4), E2 + e * 4096 + ib * 512))
    tw_fwd(0); dft(0); tw_fwd(1); dft(1)
    filt(0); idft(0); filt(1); idft(1)
    tw_inv(0); last(0)
    A('v_mov_b32 v%d, v%d' % (T + 6, C.VW2))
    A('v_xor_b32 v%d, 64, v%d' % (T + 7, C.VW2))
    tw_inv(1); put(0); last(1); put(1)
    A.wait(lg=0)
    A('s_barrier')
    A('s_mov_b32 s%d, 0x10000' % M.S_B)
    for e in range(2):
        for w in range(4):
            A('ds_read_b128 %s, v%d offset:%d' % (v(D + 16 * e + 4 * w, 4), C.VR2, E2 + w * 8192 + e * 4096))
    for e in range(2):
        for x in range(2):
            Y = lambda w: v(D + 16 * e + 4 * w + 2 * x, 2)
            Z = D2 + 16 * x
            P, Mi, Q, N = Z + 8, Z + 10, Z + 12, Z + 14
            for m in range(4):
                src = C.X + 4 * m + 2 * x + e
                A('v_lshlrev_b32 v%d, 16, v%d' % (Z + 2 * m, src))
                A('v_and_b32 v%d, 0xffff0000, v%d' % (Z + 2 * m + 1, src))
            A('v_pk_add_f32 %s, %s, %s' % (v(P, 2), Y(0), Y(2)))
            A('v_pk_add_f32 %s, %s, %s neg_lo:[0,1] neg_hi:[0,1]' % (v(Mi, 2), Y(0), Y(2)))
            A('v_pk_add_f32 %s, %s, %s' % (v(Q, 2), Y(1), Y(3)))
            A('v_pk_add_f32 %s, %s, %s neg_lo:[0,1] neg_hi:[0,1]' % (v(N, 2), Y(1), Y(3)))
            A('v_pk_add_f32 %s, %s, %s' % (v(T, 2), v(P, 2), v(Q, 2)))
            A('v_pk_add_f32 %s, %s, %s op_sel:[0,1] op_sel_hi:[1,0] neg_lo:[0,1]' % (v(T + 2, 2), v(Mi, 2), v(N, 2)))
            A('v_pk_add_f32 %s, %s, %s neg_lo:[0,1] neg_hi:[0,1]' % (v(T + 4, 2), v(P, 2), v(Q, 2)))
            A('v_pk_add_f32 %s, %s, %s op_sel:[0,1] op_sel_hi:[1,0] neg_hi:[0,1]' % (v(T + 6, 2), v(Mi, 2), v(N, 2)))
            for m in range(4):
                if e == 0:
                    A('v_pk_fma_f32 %s, %s, s[%d:%d], %s' % (v(Z + 2 * m, 2), v(T + 2 * m, 2), M.S_KEEP, M.S_KEEP + 1, v(Z + 2 * m, 2)))
                else:
                    A('v_pk_add_f32 %s, %s, %s' % (v(Z + 2 * m, 2), v(T + 2 * m, 2), v(Z + 2 * m, 2)))
                if e == 0 and x == 0:
                    A('v_and_or_b32 v%d, v%d, v%d, s%d' % (Z + 2 * m, Z + 2 * m, M.VM, M.S_B))
                    A('v_add_u32 v%d, s%d, v%d' % (Z + 2 * m + 1, M.S_TADD, Z + 2 * m + 1))
                    A('v_and_or_b32 v%d, v%d, v%d, s%d' % (Z + 2 * m + 1, Z + 2 * m + 1, M.VM, M.S_TOR))
                cvt(A, C.X + 4 * m + 2 * x + e, Z + 2 * m, Z + 2 * m + 1)
    for m in range(4):
        A('buffer_store_dwordx4 %s, v%d, %s, 0 offen offset:%d sc1' % (v(C.X + 4 * m, 4), C.VX, M.WS, 128 * m))
```

```python
import math
from common import *

import os
N_W1, N_WT, N_X, N_W2, N_Z, N_SC = 128, 128, 128, 112, 224, 16
B_W1 = 0
B_WT = B_W1 + N_W1
B_X = B_WT + N_WT
B_W2 = B_X + N_X
B_Z = B_W2 + N_W2
VB = dict(w1=(B_W1, N_W1), wt=(B_WT, N_WT), x=(B_X, N_X), w2=(B_W2, N_W2), z=(B_Z, N_Z), sc=(None, N_SC))
ORDER = os.environ.get('K1ORDER', 'sc,x,w1,w2,wt,z').split(',')
GROUPS = []
K1_GRID = 0
for _n in ORDER:
    GROUPS.append((_n, slice(K1_GRID, K1_GRID + VB[_n][1])))
    K1_GRID += VB[_n][1]
IMG = 80 * 272
K1_LDS = IMG + 20 * 1040
SC = math.sqrt(2.0 / 640)
RH = math.sqrt(0.5)

S_WV, S_ROLE, S_IDX, S_VID, S_LIVE = 26, 27, 28, 29, 30
SRD_WS, SRD_IN, SRD_F = 32, 36, 60
S_T = 40


def mfma16(A, d, x, y, c):
    A('v_mfma_f32_16x16x32_bf16 %s, %s, %s, %s' % (r(d, 4), r(x, 4), r(y, 4), '0' if c is None else r(c, 4)))


def cvt(A, d, x, y, nx=False, ny=False):
    f = lambda q, n: ('-' if n else '') + r(q) if not isinstance(q, str) else q
    A('v_cvt_pk_bf16_f32 %s, %s, %s' % (r(d), f(x, nx), f(y, ny)))


def emit_k1(A, name):
    def fin():
        A('s_branch K1_fin' if getattr(A, 'ts', False) else 's_endpgm')

    fmode = getattr(A, 'fmode', 'z')

    def fill(dat, adr, base, n):
        for i in range(4):
            A('v_mov_b32 v%d, -1' % (dat + i))
        A('s_sub_u32 s3, s%d, %d' % (S_VID, base))
        A('s_mul_i32 s3, s3, %d' % (4096 * n))
        A('v_lshl_add_u32 v%d, v0, 4, s3' % adr)
        A('s_add_u32 s%d, s%d, 0x%x' % (SRD_F, P_WS, OFF['FILL']))
        A('s_addc_u32 s%d, s%d, 0' % (SRD_F + 1, P_WS + 1))
        A('s_and_b32 s%d, s%d, 0xffff' % (SRD_F + 1, SRD_F + 1))
        A('s_and_b32 s%d, s%d, 0x%x' % (SRD_F + 2, S_LIVE, FILL_BYTES))
        A('s_mov_b32 s%d, 0x00020000' % (SRD_F + 3))
        if getattr(A, 'fsleep', 0):
            A('s_sleep %d' % A.fsleep)
        for i in range(n):
            A('buffer_store_dwordx4 %s, v%d, s[%d:%d], 0 offen%s' % (v(dat, 4), adr, SRD_F, SRD_F + 3, getattr(A, 'fillsc', ' sc1')))
            if i < n - 1:
                A('v_add_u32 v%d, 4096, v%d' % (adr, adr))

    def srd_in(ptr, nbytes):
        srd(A, SRD_IN, ptr, nbytes)
        A('s_and_b32 s%d, s%d, s%d' % (SRD_IN + 2, SRD_IN + 2, S_LIVE))
    kernel_header(A, name)
    stamp_init(A)
    stamp(A, 0)
    load_args(A)
    R = Regs(1)
    LANE, T0, T1, T2, T3, T4, T5 = [R() for _ in range(7)]
    A('v_and_b32 v%d, 63, v0' % LANE)
    A('v_lshrrev_b32 v%d, 6, v0' % T0)
    A('v_readfirstlane_b32 s%d, v%d' % (S_WV, T0))
    A('s_cmp_ge_u32 s2, %d' % K1_GRID)
    A('s_cbranch_scc1 K1_exit')
    A('s_mov_b32 s%d, -1' % S_LIVE)
    for k, (nm, sl) in enumerate(GROUPS):
        if nm == 'sc':
            assert k == 0
            A('s_lshl_b32 s3, s%d, 7' % S_WV)
            A('s_cmp_lt_u32 s2, %d' % sl.stop)
            A('s_cselect_b32 s%d, 0, -1' % S_LIVE)
        elif k == 0:
            A('s_mov_b32 s3, %d' % (VB[nm][0] - sl.start))
        else:
            A('s_cmp_ge_u32 s2, %d' % sl.start)
            A('s_cselect_b32 s3, %d, s3' % (VB[nm][0] - sl.start))
    A('s_add_u32 s%d, s2, s3' % S_VID)
    srd(A, SRD_WS, P_WS, WS_USED)
    A('s_and_b32 s%d, s%d, s%d' % (SRD_WS + 2, SRD_WS + 2, S_LIVE))
    stamp(A, 1)
    st_top = A.save()
    A('s_cmp_ge_u32 s%d, %d' % (S_VID, B_Z))
    A('s_cbranch_scc1 K1_zero')
    A('s_cmp_ge_u32 s%d, %d' % (S_VID, B_X))
    A('s_cbranch_scc1 K1_direct')
    A('s_cmp_ge_u32 s%d, %d' % (S_VID, B_WT))
    A('s_cbranch_scc1 K1_wt')

    VLD = R()
    VOA, VOB = R(), R()
    VG, VG2 = R(), R()
    MDC = R()
    B1 = R(8, 4)
    TW = R(16, 2)
    A2 = R(32, 4)
    BF = R(32, 4)
    FR = R(32, 4)
    D1 = R(32, 4)
    DAT = D1
    D2 = FR
    SO = S_T
    S_ROW = S_T + 6

    A('s_and_b32 s%d, s%d, 7' % (S_T + 8, S_VID))
    A('s_lshr_b32 s%d, s%d, 5' % (S_T + 9, S_VID))
    A('s_lshl_b32 s%d, s%d, 3' % (S_T + 9, S_T + 9))
    A('s_add_u32 s%d, s%d, s%d' % (S_T + 8, S_T + 8, S_T + 9))
    A('s_cmp_ge_u32 s%d, 27' % (S_T + 8))
    A('s_cbranch_scc1 K1_hole')
    A('s_bfe_u32 s%d, s%d, 0x20003' % (S_T + 9, S_VID))
    A('s_lshl_b32 s%d, s%d, 2' % (S_IDX, S_T + 8))
    A('s_add_u32 s%d, s%d, s%d' % (S_IDX, S_IDX, S_T + 9))
    A('s_mov_b32 s%d, 1' % S_ROLE)
    srd_in(P_W1, WB)
    A('v_lshrrev_b32 v%d, 1, v0' % T0)
    A('v_mul_u32_u24 v%d, 3456, v%d' % (VLD, T0))
    A('v_and_b32 v%d, 1, v0' % T0)
    A('v_lshl_add_u32 v%d, v%d, 4, v%d' % (VLD, T0, VLD))
    A('s_lshl_b32 s%d, s%d, 5' % (SO, S_IDX))
    for i in range(1, 5):
        A('s_add_u32 s%d, s%d, %d' % (SO + i, SO + i - 1, 128 * 3456))
    A('s_branch K1_load')
    st_w1 = A.save()

    A.label('K1_direct')
    A.restore(st_top)
    A('s_cmp_ge_u32 s%d, %d' % (S_VID, B_W2))
    A('s_cbranch_scc1 K1_dw2')
    A('s_sub_u32 s%d, s%d, %d' % (S_IDX, S_VID, B_X))
    A('s_mov_b32 s%d, 0' % S_ROLE)
    srd_in(P_X, S * D * 2)
    A('s_and_b32 s%d, s%d, 3' % (S_ROW, S_IDX))
    A('s_lshl_b32 s%d, s%d, 2' % (S_ROW, S_ROW))
    A('s_add_u32 s%d, s%d, s%d' % (S_ROW, S_ROW, S_WV))
    A('s_lshl_b32 s%d, s%d, 2' % (S_ROW, S_ROW))
    A('s_lshr_b32 s%d, s%d, 2' % (S_ROW + 1, S_IDX))
    A('s_lshl_b32 s%d, s%d, 5' % (SO, S_ROW))
    A('s_add_u32 s%d, s%d, s%d' % (SO, SO, S_ROW + 1))
    A('s_mul_i32 s%d, s%d, 1280' % (SO, SO))
    A('s_mov_b32 s%d, %d' % (S_T + 8, 32 * 1280))
    A('s_branch K1_daddr')
    st_a = A.save()
    A.label('K1_dw2')
    A.restore(st_top)
    A('s_sub_u32 s%d, s%d, %d' % (S_IDX, S_VID, B_W2))
    A('s_cmp_gt_u32 s%d, 108' % S_IDX)
    A('s_cbranch_scc1 K1_hole')
    A('s_mov_b32 s%d, 2' % S_ROLE)
    srd_in(P_W2, WB)
    A('s_lshl_b32 s%d, s%d, 2' % (S_ROW, S_IDX))
    A('s_add_u32 s%d, s%d, s%d' % (S_ROW, S_ROW, S_WV))
    A('s_lshl_b32 s%d, s%d, 2' % (S_ROW, S_ROW))
    A('s_mul_i32 s%d, s%d, 1280' % (SO, S_ROW))
    A('s_mov_b32 s%d, 1280' % (S_T + 8))
    A('s_cmp_lt_u32 s%d, 108' % S_IDX)
    A('s_cbranch_scc1 K1_daddr')
    A('s_cmp_lg_u32 s%d, 0' % S_WV)
    A('s_cbranch_scc1 K1_hole')
    A('s_mov_b32 s%d, 3' % S_ROLE)
    srd_in(P_B2, 1280)
    A('s_mov_b32 s%d, 0' % SO)
    A.label('K1_daddr')
    A.merge(st_a, A.save())
    A('v_and_b32 v%d, 3, v%d' % (T0, LANE))
    A('v_mul_lo_u32 v%d, v%d, s%d' % (VLD, T0, S_T + 8))
    A('v_lshrrev_b32 v%d, 4, v%d' % (T0, LANE))
    A('v_mul_u32_u24 v%d, 320, v%d' % (T0, T0))
    A('v_add_u32 v%d, v%d, v%d' % (VLD, VLD, T0))
    A('v_bfe_u32 v%d, v%d, 2, 2' % (T0, LANE))
    A('v_lshl_add_u32 v%d, v%d, 4, v%d' % (VLD, T0, VLD))
    for i in range(1, 5):
        A('s_add_u32 s%d, s%d, 64' % (SO + i, SO + i - 1))

    A.label('K1_load')
    A.merge(st_w1, A.save())
    for i in range(5):
        A('buffer_load_dwordx4 %s, v%d, s[%d:%d], s%d offen' % (v(DAT + 4 * i, 4), VLD, SRD_IN, SRD_IN + 3, SO + i))

    KF, GF = T4, T5
    A('v_and_b32 v%d, 15, v%d' % (T0, LANE))
    A('v_cvt_f32_ubyte0 v%d, v%d' % (KF, T0))
    A('v_lshrrev_b32 v%d, 4, v%d' % (T0, LANE))
    A('v_cvt_f32_ubyte0 v%d, v%d' % (GF, T0))
    C, Sn = BF, BF + 8
    A('v_mul_f32 v%d, v%d, v%d' % (T0, KF, GF))
    A('v_mul_f32 v%d, %s, v%d' % (T1, fl(0.25), T0))
    for i in range(5):
        A('v_fmamk_f32 v%d, v%d, %s, v%d' % (T2, KF, fl(0.05 * i), T1))
        A('v_cos_f32 v%d, v%d' % (C + i, T2))
        A('v_sin_f32 v%d, v%d' % (Sn + i, T2))
    cvt(A, B1 + 0, C + 0, C + 1)
    cvt(A, B1 + 1, C + 2, C + 3)
    cvt(A, B1 + 2, C + 4, '0')
    A('v_mov_b32 v%d, 0' % (B1 + 3))
    cvt(A, B1 + 4, Sn + 0, Sn + 1, True, True)
    cvt(A, B1 + 5, Sn + 2, Sn + 3, True, True)
    cvt(A, B1 + 6, Sn + 4, '0', True)
    A('v_mov_b32 v%d, 0' % (B1 + 7))
    A('v_mul_f32 v%d, %s, v%d' % (T1, fl(8.0 / 640), T0))
    for j in range(8):
        A('v_fmamk_f32 v%d, v%d, %s, v%d' % (T2, KF, fl(j / 640.0), T1))
        A('v_cos_f32 v%d, v%d' % (C + j, T2))
        A('v_sin_f32 v%d, v%d' % (Sn + j, T2))
    for j in range(8):
        A('v_mul_f32 v%d, %s, v%d' % (TW + 2 * j, fl(SC), C + j))
        A('v_mul_f32 v%d, %s, v%d' % (TW + 2 * j + 1, fl(-SC), Sn + j))
    A('v_bfe_u32 v%d, v%d, 1, 3' % (T0, LANE))
    A('v_cvt_f32_ubyte0 v%d, v%d' % (T3, T0))
    A('v_and_b32 v%d, 1, v%d' % (T0, LANE))
    A('v_cvt_f32_ubyte0 v%d, v%d' % (T0, T0))
    A('v_fma_f32 v%d, v%d, v%d, v%d' % (T0, T3, GF, T0))
    A('v_mul_f32 v%d, %s, v%d' % (T1, fl(0.25), T0))
    for j in range(8):
        A('v_fmamk_f32 v%d, v%d, %s, v%d' % (T2, T3, fl(j / 32.0), T1))
        A('v_cos_f32 v%d, v%d' % (C + j, T2))
        A('v_sin_f32 v%d, v%d' % (Sn + j, T2))
    rc = lambda j, m: [(C + j, False), (Sn + j, True), (C + j, True), (Sn + j, False)][m & 3]
    rs = lambda j, m: [(Sn + j, False), (C + j, False), (Sn + j, True), (C + j, True)][m & 3]
    for T in range(4):
        for part, f in ((0, rc), (1, rs)):
            for jj in range(4):
                x, y = f(2 * jj, 2 * jj * T), f(2 * jj + 1, (2 * jj + 1) * T)
                cvt(A, A2 + (T * 2 + part) * 4 + jj, x[0], y[0], x[1], y[1])
    A('v_and_b32 v%d, 15, v%d' % (T0, LANE))
    A('v_lshrrev_b32 v%d, 4, v%d' % (T1, LANE))
    A('v_lshl_add_u32 v%d, v%d, 2, v%d' % (T4, T0, T1))
    A('v_mul_u32_u24 v%d, 1040, v%d' % (T5, T0))
    A('v_cmp_gt_u32 s[%d:%d], 11, v%d' % (S_T + 10, S_T + 11, T0))
    A('v_add_u32 v%d, -1, v%d' % (T0, T0))
    A('v_cmp_gt_u32 s[%d:%d], 9, v%d' % (S_T + 12, S_T + 13, T0))
    A('v_cmp_eq_u32 vcc, 0, v%d' % LANE)
    A('v_mov_b32 v%d, %s' % (T0, fl(RH)))
    stamp(A, 2)
    if fmode == 'a':
        fill(FR, T1, 0, 4)
    if getattr(A, 'ts', False):
        A.wait(vm=4 if fmode == 'a' else 0)
    stamp(A, 3)
    A('s_cmp_eq_u32 s%d, 1' % S_ROLE)
    A('s_cbranch_scc0 K1_perm')
    st_pre = A.save()

    A('v_cndmask_b32 v%d, 1.0, 0, vcc' % MDC)
    A('v_lshrrev_b32 v%d, 4, v0' % T0)
    A('v_add_lshl_u32 v%d, v%d, v0, 4' % (T0, T0))
    for i in range(5):
        A('ds_write_b128 v%d, %s offset:%d' % (T0, v(DAT + 4 * i, 4), i * 16 * 272))
    A('v_lshrrev_b32 v%d, 4, v%d' % (T0, LANE))
    A('v_mul_u32_u24 v%d, 20, v%d' % (T0, T0))
    A('v_and_b32 v%d, 3, v%d' % (T1, LANE))
    A('v_add_u32 v%d, v%d, v%d' % (T0, T0, T1))
    A('v_mul_u32_u24 v%d, 272, v%d' % (T0, T0))
    A('s_lshl_b32 s%d, s%d, 3' % (S_T + 8, S_WV))
    A('v_add_u32 v%d, s%d, v%d' % (T0, S_T + 8, T0))
    A('v_bfe_u32 v%d, v%d, 2, 2' % (T1, LANE))
    A('v_mul_u32_u24 v%d, %d, v%d' % (T1, 4 * 272, T1))
    A('v_add_u32 v%d, v%d, v%d' % (T1, T1, T0))
    A.wait(lg=0)
    A('s_barrier')
    for j in range(8):
        A('ds_read_b64_tr_b16 %s, v%d offset:%d' % (v(FR + 4 * j, 2), T1, j * 32))
        A('ds_read_b64_tr_b16 %s, v%d offset:%d' % (v(FR + 4 * j + 2, 2), T0, j * 32 + 16 * 272))
    A('s_lshr_b32 s%d, s%d, 1' % (S_T + 8, S_IDX))
    A('s_mul_i32 s%d, s%d, 40960' % (S_T + 8, S_T + 8))
    A('s_and_b32 s%d, s%d, 1' % (S_T + 9, S_IDX))
    A('s_lshl_b32 s%d, s%d, 8' % (S_T + 9, S_T + 9))
    A('s_add_u32 s%d, s%d, s%d' % (S_T + 8, S_T + 8, S_T + 9))
    A('s_mul_i32 s%d, s%d, 10240' % (S_T + 9, S_WV))
    A('s_add_u32 s%d, s%d, s%d' % (S_T + 8, S_T + 8, S_T + 9))
    A('s_add_u32 s%d, s%d, 0x%x' % (SO, S_T + 8, OFF['W1F']))
    for i in range(1, 5):
        A('s_add_u32 s%d, s%d, 2048' % (SO + i, SO + i - 1))
    A('s_and_b32 s%d, s%d, 1' % (S_T + 8, S_WV))
    A('s_lshl_b32 s%d, s%d, 7' % (S_T + 8, S_T + 8))
    A('s_lshr_b32 s%d, s%d, 1' % (S_T + 9, S_WV))
    A('s_lshl_b32 s%d, s%d, 6' % (S_T + 9, S_T + 9))
    A('s_add_u32 s%d, s%d, s%d' % (S_T + 8, S_T + 8, S_T + 9))
    A('v_lshrrev_b32 v%d, 4, v%d' % (T2, LANE))
    A('v_lshl_add_u32 v%d, v%d, 8, v%d' % (VOA, T2, T5))
    A('v_add_u32 v%d, s%d, v%d' % (VOA, S_T + 8, VOA))
    A('v_and_b32 v%d, 15, v%d' % (T3, LANE))
    A('v_lshlrev_b32 v%d, 4, v%d' % (T3, T3))
    A('v_lshl_add_u32 v%d, v%d, 9, v%d' % (VG, T2, T3))
    A('v_mov_b32 v%d, v%d' % (VG2, VG))
    A('s_branch K1_core')
    st_w1 = A.save()

    A.label('K1_perm')
    A.restore(st_pre)
    A('v_cndmask_b32 v%d, 1.0, v%d, vcc' % (MDC, T0))
    A('s_mov_b32 s%d, 0x05040100' % (S_T + 8))
    A('s_mov_b32 s%d, 0x07060302' % (S_T + 9))
    for j in range(8):
        w_ = j >> 1
        sel = S_T + 8 + (j & 1)
        A('v_perm_b32 v%d, v%d, v%d, s%d' % (FR + 4 * j, DAT + 4 + w_, DAT + w_, sel))
        A('v_perm_b32 v%d, v%d, v%d, s%d' % (FR + 4 * j + 1, DAT + 12 + w_, DAT + 8 + w_, sel))
        if j & 1:
            A('v_lshrrev_b32 v%d, 16, v%d' % (FR + 4 * j + 2, DAT + 16 + w_))
        else:
            A('v_and_b32 v%d, 0xffff, v%d' % (FR + 4 * j + 2, DAT + 16 + w_))
        A('v_mov_b32 v%d, 0' % (FR + 4 * j + 3))
    A('s_cmp_eq_u32 s%d, 0' % S_ROLE)
    A('s_cbranch_scc0 K1_ow2')
    st_pre = A.save()
    A('s_mov_b32 s%d, 0x3f803f80' % (S_T + 8))
    A('v_mov_b32 v%d, 0' % T0)
    A('v_mov_b32 v%d, 0' % T1)
    for i in range(20):
        A('v_dot2_f32_bf16 v%d, v%d, v%d, v%d' % (T0, DAT + i, DAT + i, T0))
        A('v_dot2_f32_bf16 v%d, v%d, s%d, v%d' % (T1, DAT + i, S_T + 8, T1))
    for rr in (4, 8):
        A('v_add_f32_dpp v%d, v%d, v%d row_ror:%d row_mask:0xf bank_mask:0xf' % (T0, T0, T0, rr))
        A('v_add_f32_dpp v%d, v%d, v%d row_ror:%d row_mask:0xf bank_mask:0xf' % (T1, T1, T1, rr))
    for op in ('v_permlane16_swap_b32', 'v_permlane32_swap_b32'):
        A('v_mov_b32 v%d, v%d' % (T2, T0))
        A('v_mov_b32 v%d, v%d' % (T3, T1))
        A('%s v%d, v%d' % (op, T0, T2))
        A('%s v%d, v%d' % (op, T1, T3))
        A('v_add_f32 v%d, v%d, v%d' % (T0, T0, T2))
        A('v_add_f32 v%d, v%d, v%d' % (T1, T1, T3))
    A('v_mul_f32 v%d, %s, v%d' % (T2, fl(-1.0 / 640), T1))
    A('v_fma_f32 v%d, v%d, v%d, v%d' % (T0, T2, T1, T0))
    A('v_max_f32 v%d, 0, v%d' % (T0, T0))
    A('v_lshlrev_b32 v%d, 2, v%d' % (T2, LANE))
    A('v_cmp_gt_u32 s[%d:%d], 4, v%d' % (S_T + 8, S_T + 9, LANE))
    A('v_mov_b32 v%d, 0x%x' % (T3, OOB))
    A('v_cndmask_b32 v%d, v%d, v%d, s[%d:%d]' % (T2, T3, T2, S_T + 8, S_T + 9))
    A('s_lshl_b32 s%d, s%d, 6' % (SO, S_ROW + 1))
    A('s_add_u32 s%d, s%d, s%d' % (SO, SO, S_ROW))
    A('s_lshl_b32 s%d, s%d, 2' % (S_T + 8, SO))
    A('s_add_u32 s%d, s%d, 0x%x' % (S_T + 8, S_T + 8, OFF['SSQ0']))
    A('buffer_store_dword v%d, v%d, s[%d:%d], s%d offen sc1' % (T0, T2, SRD_WS, SRD_WS + 3, S_T + 8))
    A('s_lshl_b32 s%d, s%d, 7' % (SO, S_IDX))
    A('s_mul_i32 s%d, s%d, %d' % (S_T + 8, S_WV, 5 * 131072))
    A('s_add_u32 s%d, s%d, s%d' % (SO, SO, S_T + 8))
    A('s_add_u32 s%d, s%d, 0x%x' % (SO, SO, OFF['X']))
    for i in range(1, 5):
        A('s_add_u32 s%d, s%d, 131072' % (SO + i, SO + i - 1))
    A('s_lshl_b32 s%d, s%d, 5' % (S_T + 8, S_WV))
    A('v_lshrrev_b32 v%d, 4, v%d' % (T2, LANE))
    A('v_lshl_add_u32 v%d, v%d, 8, v%d' % (VOA, T2, T5))
    A('v_add_u32 v%d, s%d, v%d' % (VOA, S_T + 8, VOA))
    A('v_and_b32 v%d, 7, v%d' % (T3, LANE))
    A('v_lshlrev_b32 v%d, 4, v%d' % (T3, T3))
    A('v_lshrrev_b32 v%d, 3, v%d' % (T2, LANE))
    A('v_lshl_add_u32 v%d, v%d, 14, v%d' % (VG, T2, T3))
    A('v_mov_b32 v%d, v%d' % (VG2, VG))
    A('s_branch K1_core')
    st_x = A.save()
    A.label('K1_ow2')
    A.restore(st_pre)
    A('s_lshr_b32 s%d, s%d, 1' % (S_T + 8, S_IDX))
    A('s_mul_i32 s%d, s%d, 5120' % (SO, S_T + 8))
    A('s_and_b32 s%d, s%d, 1' % (S_T + 8, S_IDX))
    A('s_lshl_b32 s%d, s%d, 9' % (S_T + 8, S_T + 8))
    A('s_add_u32 s%d, s%d, s%d' % (SO, SO, S_T + 8))
    A('s_mul_i32 s%d, s%d, %d' % (S_T + 8, S_WV, 2 * 54 * 5120))
    A('s_add_u32 s%d, s%d, s%d' % (SO, SO, S_T + 8))
    A('s_add_u32 s%d, s%d, 0x%x' % (SO, SO, OFF['W2F']))
    for i, d in enumerate((2048, 4096, 54 * 5120 + 1024, 54 * 5120 + 3072)):
        A('s_add_u32 s%d, s%d, %d' % (SO + 1 + i, SO, d))
    A('v_and_b32 v%d, 31, v%d' % (T3, LANE))
    A('v_lshlrev_b32 v%d, 4, v%d' % (T3, T3))
    A('v_lshrrev_b32 v%d, 5, v%d' % (T2, LANE))
    A('v_lshl_add_u32 v%d, v%d, 10, v%d' % (VG, T2, T3))
    A('v_mul_u32_u24 v%d, %d, v%d' % (VG2, 54 * 5120 - 4096, T2))
    A('v_add_u32 v%d, v%d, v%d' % (VG2, VG2, T3))
    A('v_lshl_add_u32 v%d, v%d, 9, v%d' % (VOA, T2, T5))
    A('v_bfe_u32 v%d, v%d, 4, 1' % (T2, LANE))
    A('v_lshl_add_u32 v%d, v%d, 7, v%d' % (VOA, T2, VOA))
    A('s_lshr_b32 s%d, s%d, 1' % (S_T + 8, S_WV))
    A('s_lshl_b32 s%d, s%d, 8' % (S_T + 8, S_T + 8))
    A('s_and_b32 s%d, s%d, 1' % (S_T + 9, S_WV))
    A('s_lshl_b32 s%d, s%d, 3' % (S_T + 9, S_T + 9))
    A('s_add_u32 s%d, s%d, s%d' % (S_T + 8, S_T + 8, S_T + 9))
    A('v_add_u32 v%d, s%d, v%d' % (VOA, S_T + 8, VOA))
    A('s_cmp_eq_u32 s%d, 2' % S_ROLE)
    A('s_cbranch_scc1 K1_core')
    st_w2 = A.save()
    A('v_lshlrev_b32 v%d, 5, v%d' % (VOA, T4))
    A('v_add_u32 v%d, %d, v%d' % (VOB, 40 * 32, VOA))
    A('s_mov_b32 s%d, 0x%x' % (SO, OFF['B2F']))
    A('v_mov_b32 v%d, 0x%x' % (T3, OOB))
    A('v_cndmask_b32 v%d, v%d, v%d, s[%d:%d]' % (VOA, T3, VOA, S_T + 10, S_T + 11))
    A('v_cndmask_b32 v%d, v%d, v%d, s[%d:%d]' % (VOB, T3, VOB, S_T + 12, S_T + 13))

    A.label('K1_core')
    A.merge(st_w1, st_x, st_w2, A.save())
    stamp(A, 4)

    def stage1(jj):
        base = D1 + 16 * (jj & 1)
        for h in range(2):
            mfma16(A, base + 8 * h, FR + 4 * (2 * jj + h), B1, None)
            mfma16(A, base + 8 * h + 4, FR + 4 * (2 * jj + h), B1 + 4, None)

    def twid(jj):
        base = D1 + 16 * (jj & 1)
        for t in range(4):
            for h in range(2):
                re, im = base + 8 * h + t, base + 8 * h + 4 + t
                wr, wi = TW + 2 * (2 * jj + h), TW + 2 * (2 * jj + h) + 1
                A('v_mul_f32 v%d, v%d, v%d' % (T0 + h, re, wr))
                A('v_mul_f32 v%d, v%d, v%d' % (T2 + h, re, wi))
                A('v_fma_f32 v%d, -v%d, v%d, v%d' % (T0 + h, im, wi, T0 + h))
                A('v_fma_f32 v%d, v%d, v%d, v%d' % (T2 + h, im, wr, T2 + h))
            cvt(A, BF + 8 * t + jj, T0, T1)
            cvt(A, BF + 8 * t + 4 + jj, T2, T3)
    stage1(0)
    stage1(1)
    twid(0)
    stage1(2)
    twid(1)
    stage1(3)
    twid(2)
    twid(3)
    for n in range(4):
        for T in range(4):
            mfma16(A, D2 + 16 * n + 4 * T, A2 + 8 * T, BF + 8 * n, None)
        for T in range(4):
            mfma16(A, D2 + 16 * n + 4 * T, A2 + 8 * T + 4, BF + 8 * n + 4, D2 + 16 * n + 4 * T)
    for n in range(4):
        d = D2 + 16 * n
        A('v_mul_f32 v%d, v%d, v%d' % (d, d, MDC))
        A('v_mul_f32 v%d, %s, v%d' % (T0, fl(RH), d + 8))
        A('v_cndmask_b32 v%d, v%d, v%d, vcc' % (d + 1, d + 1, T0))
    O = BF
    stamp(A, 5)
    A('s_cmp_eq_u32 s%d, 1' % S_ROLE)
    A('s_cbranch_scc1 K1_st1')
    A('s_cmp_eq_u32 s%d, 2' % S_ROLE)
    A('s_cbranch_scc1 K1_st2')
    A('s_cmp_eq_u32 s%d, 3' % S_ROLE)
    A('s_cbranch_scc1 K1_st3')
    st_out = A.save()
    half = lambda hi: A('s_mov_b64 exec, s[%d:%d]' % (S_T + 10 + 2 * hi, S_T + 11 + 2 * hi))
    for T in range(4):
        if T % 2 == 0:
            half(T >> 1)
        for n in range(4):
            d = D2 + 16 * n + 4 * T
            if n % 2 == 0:
                A('v_add_u32 v%d, 0x10000, v%d' % (d, d))
                A('v_and_b32 v%d, 0x%x, v%d' % (d, TAGM, d))
            cvt(A, O + 8 * T + 2 * n, d, d + 1, False, T >= 2)
            cvt(A, O + 8 * T + 2 * n + 1, d + 2, d + 3, False, T >= 2)
        for h in range(2):
            A('ds_write_b128 v%d, %s offset:%d' % (VOA, v(O + 8 * T + 4 * h, 4), IMG + (T >> 1) * 10400 + (T & 1) * 128 + 16 * h))
    A('s_branch K1_out')
    st_o0 = A.save()
    A.label('K1_st1')
    A.restore(st_out)
    for Tp in range(2):
        half(Tp)
        for n in range(4):
            for T in (2 * Tp, 2 * Tp + 1):
                d = D2 + 16 * n + 4 * T
                cvt(A, O + 8 * n + 2 * T, d, d + 1, False, T >= 2)
                cvt(A, O + 8 * n + 2 * T + 1, d + 2, d + 3, False, T >= 2)
            A('ds_write_b128 v%d, %s offset:%d' % (VOA, v(O + 8 * n + 4 * Tp, 4), IMG + Tp * 10400 + 16 * n))
    A('s_branch K1_out')
    st_o1 = A.save()
    A.label('K1_st2')
    A.restore(st_out)
    for T in range(4):
        if T % 2 == 0:
            half(T >> 1)
        for t in range(4):
            ng = T >= 2 and (t & 1) == 1
            o = O + 8 * T + 2 * t
            cvt(A, o, D2 + 4 * T + t, D2 + 16 + 4 * T + t, ng, ng)
            cvt(A, o + 1, D2 + 32 + 4 * T + t, D2 + 48 + 4 * T + t, ng, ng)
            A('ds_write_b64 v%d, %s offset:%d' % (VOA, v(o, 2), IMG + (T >> 1) * 10400 + (4 * (T & 1) + t) * 16))
    A.label('K1_out')
    A.merge(st_o0, st_o1, A.save())
    A('s_mov_b64 exec, -1')
    A('s_mul_i32 s%d, s%d, 5200' % (S_T + 8, S_WV))
    A('v_lshlrev_b32 v%d, 4, v%d' % (T0, LANE))
    A('v_add_u32 v%d, s%d, v%d' % (T0, S_T + 8, T0))
    A.wait(lg=0)
    A('s_barrier')
    for j in range(5):
        A('ds_read_b128 %s, v%d offset:%d' % (v(D2 + 4 * j, 4), T0, IMG + 1040 * j))
    for j in range(5):
        A('buffer_store_dwordx4 %s, v%d, s[%d:%d], s%d offen sc1' % (v(D2 + 4 * j, 4), VG2 if j == 2 else VG, SRD_WS, SRD_WS + 3, SO + j))
    fin()
    A.label('K1_st3')
    A.restore(st_out)
    for T in range(4):
        if T >= 2:
            for t in (1, 3):
                A('v_xor_b32 v%d, 0x80000000, v%d' % (D2 + 4 * T + t, D2 + 4 * T + t))
        A('buffer_store_dwordx4 %s, v%d, s[%d:%d], s%d offen offset:%d sc1' %
          (v(D2 + 4 * T, 4), VOB if T >= 2 else VOA, SRD_WS, SRD_WS + 3, SO, 16 * (T & 1)))
    fin()
    A.label('K1_zero')
    A.restore(st_top)
    if fmode == 'z':
        fill(A2, T0, B_Z, 8)
        fin()
    A.label('K1_hole')
    A.restore(st_top)
    if fmode == 'a':
        fill(A2, T0, 0, 4)
    A.label('K1_exit')
    A('s_endpgm')
    nv = R.max

    A.label('K1_wt')
    A.restore(st_top)
    R = Regs(8)
    RS = 656
    DT = R(40, 4)
    VA, VL, VS = R(), R(), R()
    A('s_sub_u32 s%d, s%d, %d' % (S_IDX, S_VID, B_WT))
    A('s_and_b32 s%d, s%d, 1' % (S_T, S_WV))
    A('s_cmp_eq_u32 s%d, 0' % S_T)
    A('s_cselect_b32 s%d, s%d, s%d' % (SRD_IN, P_WR, P_WI))
    A('s_cselect_b32 s%d, s%d, s%d' % (SRD_IN + 1, P_WR + 1, P_WI + 1))
    A('s_and_b32 s%d, s%d, 0xffff' % (SRD_IN + 1, SRD_IN + 1))
    A('s_and_b32 s%d, s%d, %d' % (SRD_IN + 2, S_LIVE, 2048 * 642))
    A('s_mov_b32 s%d, 0x00020000' % (SRD_IN + 3))
    A('s_lshr_b32 s%d, s%d, 3' % (S_T, S_IDX))
    A('s_lshl_b32 s%d, s%d, 7' % (S_T, S_T))
    A('s_lshr_b32 s%d, s%d, 1' % (S_T + 1, S_WV))
    A('s_lshl_b32 s%d, s%d, 6' % (S_T + 1, S_T + 1))
    A('s_add_u32 s%d, s%d, s%d' % (S_T, S_T, S_T + 1))
    A('s_and_b32 s%d, s%d, 1' % (S_T + 1, S_IDX))
    A('s_lshl_b32 s%d, s%d, 5' % (S_T + 1, S_T + 1))
    A('s_add_u32 s%d, s%d, s%d' % (S_T, S_T, S_T + 1))
    A('s_bfe_u32 s%d, s%d, 0x20001' % (S_T + 1, S_IDX))
    A('s_add_u32 s%d, s%d, s%d' % (S_T, S_T, S_T + 1))
    A('s_mul_i32 s%d, s%d, 642' % (S_T, S_T))
    A('s_and_b32 s%d, s%d, 2' % (S_T + 2, S_T))
    A('s_and_b32 s%d, s%d, -4' % (S_T, S_T))
    A('v_lshlrev_b32 v%d, 4, v%d' % (VL, LANE))
    A('v_mov_b32 v%d, 0x%x' % (T0, OOB))
    A('v_cmp_gt_u32 vcc, 41, v%d' % LANE)
    A('v_cndmask_b32 v%d, v%d, v%d, vcc' % (VA, T0, VL))
    for ii in range(8):
        A('buffer_load_dwordx4 %s, v%d, s[%d:%d], s%d offen' % (v(DT + 4 * ii, 4), VA, SRD_IN, SRD_IN + 3, S_T))
        if ii < 7:
            A('s_add_u32 s%d, s%d, %d' % (S_T, S_T, 4 * 642))
    if fmode == 'a':
        fill(DT + 32, T0, 0, 4)
    if fmode == 'wt':
        fill(DT + 32, T0, B_WT, 14)
    A('s_mul_i32 s%d, s%d, %d' % (S_T, S_WV, 8 * RS))
    A('v_add_u32 v%d, s%d, v%d' % (VL, S_T, VL))
    A('s_mov_b64 s[%d:%d], exec' % (S_T + 4, S_T + 5))
    A('s_mov_b64 exec, vcc')
    for ii in range(8):
        A('ds_write_b128 v%d, %s offset:%d' % (VL, v(DT + 4 * ii, 4), ii * RS))
    A('s_mov_b64 exec, s[%d:%d]' % (S_T + 4, S_T + 5))
    A('v_and_b32 v%d, 7, v0' % T0)
    A('v_mul_u32_u24 v%d, %d, v%d' % (VL, RS, T0))
    A('v_add_u32 v%d, s%d, v%d' % (VL, S_T + 2, VL))
    A('v_lshrrev_b32 v%d, 3, v0' % T1)
    A('v_lshlrev_b32 v%d, 14, v%d' % (VS, T1))
    A('v_lshl_add_u32 v%d, v%d, 4, v%d' % (VS, T0, VS))
    A('s_lshl_b32 s%d, s%d, 7' % (S_T, S_IDX))
    A('s_add_u32 s%d, s%d, 0x%x' % (S_T, S_T, OFF['WT']))
    A('v_bfe_u32 v%d, v0, 3, 1' % T2)
    A('v_mul_u32_u24 v%d, 160, v%d' % (T2, T2))
    A('v_bfe_u32 v%d, v0, 4, 2' % T3)
    A('v_mad_u32_u24 v%d, v%d, 40, v%d' % (T2, T3, T2))
    A('v_add_u32 v%d, s%d, v%d' % (T2, S_WV, T2))
    A.wait(lg=0)
    A('s_barrier')
    EA, EB = R(), R()
    for it in range(5):
        if it < 2:
            A('v_add_u32 v%d, %d, v%d' % (T0, 4 * it, T2))
            A('v_lshl_add_u32 v%d, v%d, 1, v%d' % (EA, T0, VL))
            A('v_add_u32 v%d, 40, v%d' % (EB, EA))
            if it == 0:
                A('v_cmp_gt_u32 vcc, 8, v0')
                A('v_add_u32 v%d, 640, v%d' % (T0, VL))
                A('v_cndmask_b32 v%d, v%d, v%d, vcc' % (EA, EA, T0))
        else:
            A('v_sub_u32 v%d, %d, v%d' % (T0, 330 - 4 * it, T2))
            A('v_lshl_add_u32 v%d, v%d, 1, v%d' % (EA, T0, VL))
            A('v_add_u32 v%d, -40, v%d' % (EB, EA))
            if it == 2:
                A('s_cmp_eq_u32 s%d, 3' % S_WV)
                A('s_cbranch_scc1 K1_wt_hi')
                st = A.save()
                A('v_add_u32 v%d, %d, v%d' % (T0, 4 * it, T2))
                A('v_lshl_add_u32 v%d, v%d, 1, v%d' % (EA, T0, VL))
                A('v_add_u32 v%d, 40, v%d' % (EB, EA))
                A.label('K1_wt_hi')
                A.merge(st, A.save())
        o = DT + 8 * it
        for h in range(2):
            for e, ad in ((0, EA), (1, EB)):
                A('ds_read_u16 v%d, v%d offset:%d' % (o + 2 * h + e, ad, h * 16 * RS))
                A('ds_read_u16 v%d, v%d offset:%d' % (o + 4 + 2 * h + e, ad, h * 16 * RS + 8 * RS))
    for it in range(5):
        o = DT + 8 * it
        for i in range(4):
            A('v_lshl_or_b32 v%d, v%d, 16, v%d' % (o + i, o + 4 + i, o + i))
        A('buffer_store_dwordx4 %s, v%d, s[%d:%d], s%d offen sc1' % (v(o, 4), VS, SRD_WS, SRD_WS + 3, S_T))
        if it < 4:
            A('s_add_u32 s%d, s%d, %d' % (S_T, S_T, 32 * 16384))
    fin()

    if getattr(A, 'ts', False):
        A.label('K1_fin')
        A.reset()
        stamp(A, 6)
        stamp_flush(A, 0, 's[%d:%d]' % (SRD_WS, SRD_WS + 3), S_WV, 7)
        A('s_endpgm')
    nv = (nv + 7) // 8 * 8
    return nv
```

```python
from common import *
from k1 import mfma16, cvt
from prep import flag_loads

XT = 0
RED = 81920
SQP = RED + 61440
MAIN_LDS = SQP + 1024
KG = 2.0 * (2.0 / 3.141592653589793) ** 0.5 * 1.4426950408889634

WA = [256 + 4 * i for i in range(40)]
WB_ = [192 + 4 * i for i in range(16)] + [256 + 160 + 4 * i for i in range(24)]


def mfma32(A, d, x, y, c):
    A('v_mfma_f32_32x32x16_bf16 %s, %s, %s, %s' % (r(d, 16), r(x, 4), r(y, 4), '0' if c is None else r(c, 16)))


class G1Regs:
    def __init__(self, base):
        R = Regs(base)
        self.ACC = R(32, 4)
        self.BR = R(32, 4)
        self.BIAS = R(16, 4)
        self.T = R(8, 2)
        self.O = R(8, 4)
        self.RHO = R(2)
        self.VXR, self.VH, self.VXW, self.SS0, self.SS1 = [R() for _ in range(5)]
        self.ST = R(80, 4)
        self.end = R.n
        self.SH = [self.ST + 4 * i for i in range(20)] + WA + WB_[16:26]


def g1_setup(A, M):
    A('s_lshr_b32 s%d, s%d, 1' % (M.S_A, M.S_N))
    A('s_mul_i32 s%d, s%d, 14' % (M.S_A, M.S_A))
    A('s_add_u32 s%d, s%d, s%d' % (M.S_A, M.S_A, M.S_WV))
    A('s_and_b32 s%d, s%d, 1' % (M.S_B, M.S_N))
    A('s_lshl_b32 s%d, s%d, 2' % (M.S_PA, M.S_B))
    A('s_add_u32 s%d, s%d, s%d' % (M.S_PA, M.S_PA, M.S_A))
    A('s_cmp_lt_u32 s%d, 6' % M.S_N)
    A('s_cselect_b32 s%d, 3, 2' % M.S_HASB)
    A('s_mul_i32 s%d, s%d, s%d' % (M.S_B, M.S_B, M.S_HASB))
    A('s_add_u32 s%d, s%d, s%d' % (M.S_PB, M.S_A, M.S_B))
    A('s_add_u32 s%d, s%d, 8' % (M.S_PB, M.S_PB))
    A('s_cmp_lt_u32 s%d, s%d' % (M.S_WV, M.S_HASB))
    A('s_cselect_b32 s%d, 1, 0' % M.S_HASB)


def g1_weight_addr(A, M):
    A('s_mul_i32 s%d, s%d, 40960' % (M.S_A, M.S_PA))
    A('v_add_u32 v%d, s%d, v%d' % (M.VWA, M.S_A, M.VL16))
    A('s_mul_i32 s%d, s%d, 40960' % (M.S_A, M.S_PB))
    A('s_cmp_eq_u32 s%d, 0' % M.S_HASB)
    A('s_cselect_b32 s%d, 0x%x, s%d' % (M.S_A, OOB, M.S_A))
    A('v_add_u32 v%d, s%d, v%d' % (M.VWB, M.S_A, M.VL16))


def g1_weight_loads(A, M):
    out = []
    for tile, homes in ((0, WA), (1, WB_)):
        for i in range(40):
            def f(i=i, tile=tile, homes=homes):
                if (i & 3) == 0:
                    A('s_mov_b32 s%d, 0x%x' % (M.S_W, OFF['W1F'] + 1024 * i))
                A('buffer_load_dwordx4 %s, v%d, %s, s%d offen offset:%d' % (r(homes[i], 4), M.VWB if tile else M.VWA, M.WS, M.S_W, (i & 3) * 1024))
            out.append(f)
    return out


def stream_load(A, M, i, home):
    if i in getattr(A, 'drop', ()):
        return
    A('s_mov_b32 s%d, 0x%x' % (M.S_W2, 1024 * (i & ~3)))
    A('buffer_load_dwordx4 %s, v%d, %s, s%d offen offset:%d sc1' % (r(home, 4), M.VW2, M.WS, M.S_W2, (i & 3) * 1024))


def g1_bias_loads(A, M, G):
    T = G.T
    A('v_lshrrev_b32 v%d, 5, v%d' % (T, M.LANE))
    A('v_lshlrev_b32 v%d, 4, v%d' % (T, T))
    for tile in range(2):
        A('s_lshl_b32 s%d, s%d, 6' % (M.S_A, M.S_PB if tile else M.S_PA))
        A('v_add_u32 v%d, s%d, v%d' % (T + 1, M.S_A, T))
        for jj in range(2):
            A('buffer_load_dwordx4 %s, v%d, %s, 0 offen offset:%d' % (v(G.BIAS + 8 * tile + 4 * jj, 4), T + 1, M.B1, 32 * jj))


def g1_addr(A, M, G):
    T = G.T
    A('v_and_b32 v%d, 31, v0' % T)
    A('v_lshlrev_b32 v%d, 4, v%d' % (T, T))
    A('v_lshrrev_b32 v%d, 5, v0' % (T + 1))
    A('v_lshl_add_u32 v%d, v%d, 15, v%d' % (G.VH, T + 1, T))
    A('s_lshl_b32 s%d, s%d, 9' % (M.S_A, M.S_T))
    A('v_add_u32 v%d, s%d, v%d' % (G.VH, M.S_A, G.VH))
    A('v_lshl_add_u32 v%d, v%d, 10, v%d' % (G.VXW, T + 1, T))
    A('v_lshrrev_b32 v%d, 5, v%d' % (T + 1, M.LANE))
    A('v_lshl_add_u32 v%d, v%d, 10, v%d' % (G.VXR, T + 1, T))
    A('v_add_u32 v%d, s%d, v%d' % (M.VW2, M.S_STR, M.VL16))
    A('v_lshrrev_b32 v%d, 4, v%d' % (T, M.LANE))
    A('v_and_b32 v%d, 15, v%d' % (T + 1, M.LANE))
    A('v_lshlrev_b32 v%d, 4, v%d' % (T + 1, T + 1))
    A('v_lshl_add_u32 v%d, v%d, 10, v%d' % (M.VHR, T, T + 1))
    A('s_mul_i32 s%d, s%d, %d' % (M.S_A, M.S_WV, 14 * 4096))
    A('s_add_u32 s%d, s%d, s%d' % (M.S_A, M.S_A, M.S_H))
    A('v_add_u32 v%d, s%d, v%d' % (M.VHR, M.S_A, M.VHR))


def spin(A, M, dst, load, sleep, mask, want):
    l = A.newlabel('spin')
    A.wait(vm=0)
    A.label(l)
    A('s_sub_u32 s%d, s%d, 1' % (M.S_BUD, M.S_BUD))
    A('s_cbranch_scc1 %s_out' % l)
    load()
    A('v_and_b32 v%d, %s, v%d' % (dst, mask, dst))
    A('v_cmp_ne_u32 vcc, %s, v%d' % (want, dst))
    A('s_cbranch_vccz %s_ok' % l)
    A('s_sleep %d' % sleep)
    A('s_branch %s' % l)
    A.label(l + '_out')
    A('s_mov_b32 s%d, 0' % M.S_BUD)
    A.label(l + '_ok')


def g1_prespin(A, M, G):
    tg = 's%d' % M.S_XTAG
    spin(A, M, G.ST, lambda: A('buffer_load_dword v%d, v%d, %s, 0 offen sc1' % (G.ST, G.VH, M.WS)), 2, tg, tg)


def g1_stage(A, M, G):
    T = G.T
    MK = M.S_MK
    for it in range(10):
        A('s_mov_b32 s%d, 0' % (MK + it))
    A('s_mov_b32 s%d, 10' % M.S_C)
    A('v_cmp_gt_u32 vcc, 32, v0')
    A('v_mov_b32 v%d, 0xffff0000' % T)
    A('v_cndmask_b32 v%d, -1, v%d, vcc' % (T, T))
    A('v_add_u32 v%d, %d, v%d' % (T + 3, 5 * 8192, G.VXW))
    A('v_mov_b32 v%d, 0' % G.SS0)
    A('v_mov_b32 v%d, 0' % G.SS1)
    lr = A.newlabel('stage')
    A.label(lr)
    for it in range(10):
        ad = T + 6 + (it & 1)
        A('v_or_b32 v%d, s%d, v%d' % (ad, MK + it, G.VH))
        A('s_mov_b32 s%d, 0x%x' % (M.S_A, it * 262144))
        A('s_mov_b32 s%d, 0x%x' % (M.S_B, it * 262144 + 16384))
        A('buffer_load_dwordx4 %s, v%d, %s, s%d offen sc1' % (v(G.ST + 8 * it, 4), ad, M.WS, M.S_A))
        A('buffer_load_dwordx4 %s, v%d, %s, s%d offen sc1' % (v(G.ST + 8 * it + 4, 4), ad, M.WS, M.S_B))
    for it in range(10):
        s0 = G.ST + 8 * it
        ls = '%s_%d' % (lr, it)
        A('v_bitop3_b32 v%d, v%d, v%d, s%d bitop3:0x80' % (T + 4, s0, s0 + 4, M.S_XTAG))
        A('v_cmp_eq_u32 vcc, 0, v%d' % (T + 4))
        A('s_cmp_lg_u32 s%d, 0' % (MK + it))
        A('s_cbranch_scc1 %s' % ls)
        st1 = A.save()
        A('s_cbranch_vccnz %s' % ls)
        st2 = A.save()
        A('v_swap_b32 v%d, v%d' % (s0 + 2, s0 + 4))
        A('v_swap_b32 v%d, v%d' % (s0 + 3, s0 + 5))
        ad = G.VXW if it < 5 else T + 3
        for par in range(2):
            A('ds_write_b128 v%d, %s offset:%d' % (ad, v(s0 + 4 * par, 4), XT + (it % 5) * 8192 + 512 * par))
        A('s_mov_b32 s%d, 0x%x' % (MK + it, OOB))
        A('s_sub_u32 s%d, s%d, 1' % (M.S_C, M.S_C))
        for i in range(4):
            for par in range(2):
                acc = G.SS0 + par
                x = s0 + 4 * par + i
                if it == 0 and i == 0:
                    A('v_and_b32 v%d, v%d, v%d' % (T + 1 + par, T, x))
                    x = T + 1 + par
                A('v_dot2_f32_bf16 v%d, v%d, v%d, v%d' % (acc, x, x, acc))
        A.label(ls)
        A.merge(st1, st2, A.save())
    A('s_cmp_eq_u32 s%d, 0' % M.S_C)
    A('s_cbranch_scc1 %s_ok' % lr)
    st = A.save()
    A.wait(lg=0)
    A('s_sub_u32 s%d, s%d, 1' % (M.S_BUD, M.S_BUD))
    A('s_cbranch_scc0 %s' % lr)
    A('s_mov_b32 s%d, 0' % M.S_BUD)
    A.label(lr + '_ok')
    A.merge(st, A.save())
    A('v_permlane32_swap_b32 v%d, v%d' % (G.SS0, G.SS1))
    A('v_add_f32 v%d, v%d, v%d' % (G.SS0, G.SS0, G.SS1))
    A('s_lshl_b32 s%d, s%d, 2' % (M.S_A, M.S_WV))
    A('v_lshlrev_b32 v%d, 4, v%d' % (T, M.LANE))
    A('v_add_u32 v%d, s%d, v%d' % (T, M.S_A, T))
    A('v_add_u32 v%d, %d, v%d' % (T, SQP, T))
    A('ds_write_b32 v%d, v%d' % (T, G.SS0))
    A.wait(lg=0)
    A('s_barrier')


def g1_rho(A, M, G):
    T, O = G.T, G.O
    L = []
    L.append(lambda: A('v_and_b32 v%d, 31, v%d' % (T, M.LANE)))
    L.append(lambda: A('v_lshlrev_b32 v%d, 4, v%d' % (T, T)))
    L.append(lambda: A('v_add_u32 v%d, %d, v%d' % (T, SQP, T)))
    for par in range(2):
        L.append(lambda par=par: A('ds_read_b128 %s, v%d offset:%d' % (v(O + 4 * par, 4), T, 512 * par)))
    L.append(lambda: A('v_mov_b32 v%d, v%d' % (G.VH, G.VXR)))
    L.append(lambda: A('v_mov_b32 v%d, %s' % (T + 1, fl(1e-5))))
    L.append(None)
    L.append(None)
    for par in range(2):
        o = O + 4 * par
        for txt in ('v_add_f32 v%d, v%d, v%d' % (o, o, o + 1),
                    'v_add_f32 v%d, v%d, v%d' % (o + 2, o + 2, o + 3),
                    'v_add_f32 v%d, v%d, v%d' % (o, o, o + 2),
                    'v_mul_f32 v%d, %s, v%d' % (o, fl(1.0 / 640), o),
                    'v_add_f32 v%d, v%d, v%d' % (o + 1, o, T + 1),
                    'v_rsq_f32 v%d, v%d' % (o + 1, o + 1),
                    'v_mul_f32 v%d, v%d, v%d' % (o, o, o + 1),
                    'v_fma_f32 v%d, v%d, v%d, v%d' % (o, o, o + 1, T + 1),
                    'v_rsq_f32 v%d, v%d' % (o, o),
                    'v_mul_f32 v%d, v%d, v%d' % (G.RHO + par, o, o + 1)):
            L.append(lambda txt=txt: A(txt))
    return L


def g1_epilogue(A, M, G, unit):
    tile, half = unit >> 1, unit & 1
    acc = G.ACC + 16 * (unit & 1)
    T, O = G.T, G.O
    L = []
    add = lambda txt: L.append(lambda txt=txt: A(txt))
    for pr in range(8):
        bsrc = G.BIAS + 8 * tile + pr
        for h in range(2):
            x, tt = acc + 2 * pr + h, T + 4 * h
            add(('v_and_b32 v%d, 0xffff0000, v%d' if h else 'v_lshlrev_b32 v%d, 16, v%d') % (tt, bsrc))
            add('v_fma_f32 v%d, v%d, v%d, v%d' % (x, x, G.RHO + half, tt))
            add('v_mul_f32 v%d, v%d, v%d' % (tt, x, x))
            add('v_fmaak_f32 v%d, v%d, v%d, %s' % (tt, G.SS0, tt, fl(-KG)))
            add('v_mul_f32 v%d, v%d, v%d' % (tt, tt, x))
            add('v_exp_f32 v%d, v%d' % (tt, tt))
        for h in range(2):
            tt = T + 4 * h
            add('v_add_f32 v%d, 1.0, v%d' % (tt, tt))
            add('v_rcp_f32 v%d, v%d' % (tt, tt))
        for h in range(2):
            x, tt = acc + 2 * pr + h, T + 4 * h
            add('v_mul_f32 v%d, v%d, v%d' % (x, x, tt))
        if pr & 3 == 0:
            add('v_add_u32 v%d, s%d, v%d' % (acc + 2 * pr, M.S_TADD, acc + 2 * pr))
            add('v_and_or_b32 v%d, v%d, v%d, s%d' % (acc + 2 * pr, acc + 2 * pr, M.VM, M.S_TOR))
        add('v_cvt_pk_bf16_f32 v%d, v%d, v%d' % (O + pr, acc + 2 * pr, acc + 2 * pr + 1))
        if pr & 3 == 3:
            jj = pr >> 2
            add('buffer_store_dwordx4 %s, v%d, %s, s%d offen offset:%d sc1' % (v(O + 4 * jj, 4), G.VH, M.WS, M.S_HT + tile, 2048 * jj + 512 * half))
    return L


def drain(L, n=None):
    k = 0
    while L and (n is None or k < n):
        f = L.pop(0)
        if f is not None:
            f()
        k += 1


def h_load1(A, M, g, rt, dst):
    A('s_mov_b32 s%d, 0x%x' % (M.S_A, 4096 * g))
    A('buffer_load_dwordx4 %s, v%d, %s, s%d offen offset:%d sc1' % (r(dst + 4 * rt, 4), M.VHR, M.WS, M.S_A, 256 * rt))


def h_load(A, M, g, dst):
    A('s_mov_b32 s%d, 0x%x' % (M.S_A, 4096 * g))
    for rt in range(4):
        A('buffer_load_dwordx4 %s, v%d, %s, s%d offen offset:%d sc1' % (r(dst + 4 * rt, 4), M.VHR, M.WS, M.S_A, 256 * rt))


H_FIRST = [192 + 16 * i for i in range(4)]


class Pacer:
    def __init__(self, items, pace):
        self.q, self.pace, self.t, self.next = list(items), pace, 0, 0

    def tick(self, cycles, pos):
        self.t += cycles
        while self.q and self.t >= self.next and self.q[0][0] <= pos:
            self.q.pop(0)[1]()
            self.next = max(self.next, self.t - self.pace) + self.pace

    def flush(self):
        while self.q:
            self.q.pop(0)[1]()


def g1_body(A, M, G, o):
    DEPTH = 6
    A('v_mov_b32 v%d, %s' % (G.SS0, fl(-KG * 0.044715)))
    for tile in range(2):
        A('s_lshl_b32 s%d, s%d, 12' % (M.S_HT + tile, M.S_PB if tile else M.S_PA))
        A('s_add_u32 s%d, s%d, s%d' % (M.S_HT + tile, M.S_HT + tile, M.S_H))
    A('v_add_u32 v%d, 40960, v%d' % (G.VXW, G.VXR))
    ready = lambda i: 0 if i < 20 else (20 + i if i < 60 else 76 + i)
    items = [(ready(i), lambda i=i: stream_load(A, M, i, G.SH[i])) for i in range(o['nf'])]
    hitems = [(max(o['h_at'], 120 + 4 * g + rt), lambda g=g, rt=rt: h_load1(A, M, g, rt, H_FIRST[g])) for g in range(4) for rt in range(4)]
    P = Pacer(items + hitems, o['pace'])

    def rd(i):
        u, ks = divmod(i, 40)
        off = ks * 2048 + 512 * (u & 1)
        ad = G.VXR if off < 65536 else G.VXW
        A('ds_read_b128 %s, v%d offset:%d' % (v(G.BR + 4 * (i % 8), 4), ad, XT + (off if off < 65536 else off - 40960)))

    def unit(u, fill):
        homes = WB_ if u >> 1 else WA
        acc = G.ACC + 16 * (u & 1)
        for ks in range(40):
            i = 40 * u + ks
            mfma32(A, acc, homes[ks], G.BR + 4 * (i % 8), None if ks == 0 else acc)
            if i + DEPTH < 160:
                rd(i + DEPTH)
            if ks >= 1:
                drain(fill, 4)
            P.tick(37, i)
        drain(fill)

    def tail(L, P_):
        while L:
            drain(L, 1)
            P_.tick(5, 999)
    for i in range(DEPTH):
        rd(i)
    unit(0, g1_rho(A, M, G))
    stamp(A, 4)
    unit(1, g1_epilogue(A, M, G, 0))
    stamp(A, 5)
    lb, le = A.newlabel('G1_one'), A.newlabel('G1_end')
    A('s_cmp_eq_u32 s%d, 0' % M.S_HASB)
    A('s_cbranch_scc1 %s' % lb)
    st = A.save()
    rest = [x for x in P.q if x not in hitems]
    unit(2, g1_epilogue(A, M, G, 1))
    stamp(A, 6)
    unit(3, g1_epilogue(A, M, G, 2))
    stamp(A, 7)
    tail(g1_epilogue(A, M, G, 3), P)
    P.flush()
    A('s_branch %s' % le)
    st2 = A.save()
    A.label(lb)
    A.restore(st)
    drain(g1_epilogue(A, M, G, 1))
    for x in rest:
        x[1]()
        A('s_sleep 1')
    A('s_mov_b32 s%d, 0x%x' % (M.S_A, 4096 * 3))
    spin(A, M, H_FIRST[0], lambda: A('buffer_load_dword v%d, v%d, %s, s%d offen offset:768 sc1' % (H_FIRST[0], M.VHR, M.WS, M.S_A)), 2, '1', 's%d' % M.S_LAYER)
    for x in hitems:
        x[1]()
    A.label(le)
    A.merge(st2, A.save())


class G2Regs:
    def __init__(self):
        self.ACC = 8
        self.BI = 88
        self.VL, self.VQ, self.VO, self.VS = 108, 109, 110, 111
        self.T = 192


def g2_bias_loads(A, M, G2, final):
    T = M.VWA
    A('v_lshrrev_b32 v%d, 4, v%d' % (T, M.LANE))
    if final:
        A('v_lshlrev_b32 v%d, 4, v%d' % (T + 1, T))
        A('v_lshlrev_b32 v%d, 3, v%d' % (T, T))
        A('s_mul_i32 s%d, s%d, 160' % (M.S_A, M.S_N))
        for u in range(2):
            A('buffer_load_dwordx4 %s, v%d, %s, s%d offen offset:%d' % (v(G2.BI + 4 * u, 4), T + 1, M.B2, M.S_A, 64 * u))
        A('buffer_load_dwordx2 %s, v%d, %s, s%d offen offset:128' % (v(G2.BI + 8, 2), T, M.B2, M.S_A))
    else:
        A('v_lshlrev_b32 v%d, 4, v%d' % (T, T))
        A('s_mul_i32 s%d, s%d, 320' % (M.S_A, M.S_N))
        A('s_add_u32 s%d, s%d, 0x%x' % (M.S_A, M.S_A, OFF['B2F']))
        for ct in range(5):
            A('buffer_load_dwordx4 %s, v%d, %s, s%d offen offset:%d' % (v(G2.BI + 4 * ct, 4), T, M.WS, M.S_A, 64 * ct))
        flag_loads(A, M, 256, T)


def g2_main(A, M, G, G2, final, o):
    tile = lambda ct, rt: G2.ACC + 4 * (4 * ct + rt)
    T0, T1 = M.VWA, M.VWB
    started = set()
    nf = o['nf']

    def mm(ct, rt, a_, b_):
        d = tile(ct, rt)
        mfma16(A, d, a_, b_, d if d in started else None)
        started.add(d)
    if final:
        QB = [256 + 200, 256 + 216]
        left = [(256 + 232 + 4 * i, -999) for i in range(6)] + [(x, -1) for x in G.SH[20:25]] + [(QB[0] + 4 * i, -1) for i in range(8)] + [(x, -61) for x in G.SH[0:6]]
        left.sort(key=lambda x: x[1])
        homes = [(x, -999) for x in G.SH] + left
        slots = [(G.ST + 32, -41), (G.ST + 48, -21), (G.ST + 64, -21)]
        k0 = 25
    else:
        homes = [(x, -999) for x in G.SH]
        slots = [(256 + 200 + 16 * i, -999) for i in range(3)] + [(G.ST + 16 * i, 20 * (0, 1, 2, 3, 3)[i] + 19) for i in range(5)]
        k0 = 0
    WF = [x[0] for x in homes[k0:]]
    plan = list(H_FIRST)
    hrdy = [-999] * 4
    free = slots + [(H_FIRST[g], 20 * g + 19) for g in range(4)]
    for g in range(4, 14):
        free.sort(key=lambda x: (x[1], x[0]))
        vg = [x for x in free if x[0] < 256 and g >= 8 and x[1] <= o['late']]
        reg, ft = vg[0] if vg else free[0]
        free.remove((reg, ft))
        plan.append(reg)
        hrdy.append(max(ft, o['late'] if g >= 8 else -999))
        free.append((reg, 20 * g + 19))
    issued = set(range(4))

    def hl(g, rt):
        issued.add(g)
        h_load1(A, M, g, rt, plan[g])
    ent = [((i - k0) // 5 - 0.5, homes[i][1], lambda i=i: stream_load(A, M, i, homes[i][0])) for i in range(nf, len(homes))]
    ent += [(g, hrdy[g], lambda g=g, rt=rt: hl(g, rt)) for g in range(4, 14) for rt in range(4)]
    ent.sort(key=lambda x: x[0])
    clk = [0, 0]

    def tick(pos, force=None):
        clk[0] += 17
        while True:
            c = [x for x in ent if x[1] <= pos]
            if not c or not (clk[0] >= clk[1] or (force is not None and c[0][0] <= force)):
                break
            ent.remove(c[0])
            c[0][2]()
            clk[1] = max(clk[1], clk[0] - o['pace2']) + o['pace2']
        assert force is None or all(x[0] > force for x in ent)
    if final:
        A('v_lshrrev_b32 v%d, 4, v%d' % (T0, M.LANE))
        A('v_and_b32 v%d, 15, v%d' % (T1, M.LANE))
        A('v_lshlrev_b32 v%d, 4, v%d' % (T1, T1))
        A('v_lshl_add_u32 v%d, v%d, 10, v%d' % (G2.VQ, T0, T1))
        A('s_mul_i32 s%d, s%d, 20480' % (M.S_A, M.S_WV))
        A('v_add_u32 v%d, s%d, v%d' % (G2.VQ, M.S_A, G2.VQ))

        def qrd(ks):
            for rt in range(4):
                A('ds_read_b128 %s, v%d offset:%d' % (r(QB[ks % 2] + 4 * rt, 4), G2.VQ, XT + 4096 * ks + 256 * rt))
        qrd(0)
        qrd(1)
        for ks in range(5):
            for rt in range(4):
                for ct in range(5):
                    mm(ct, rt, G.SH[5 * ks + ct], QB[ks % 2] + 4 * rt)
                    tick(20 * ks + 5 * rt + ct - 100)
            if ks + 2 < 5:
                qrd(ks + 2)
    le = A.newlabel('G2_skip')
    op3, op2, cc = ('0x80', '0x80', 'eq') if final else ('0xfe', '0xa8', 'ne')

    def check_ops(g):
        b = plan[g]
        if b < 256:
            return ['v_bitop3_b32 v%d, v%d, v%d, v%d bitop3:%s' % (T0, b, b + 4, b + 8, op3),
                    'v_bitop3_b32 v%d, v%d, v%d, 1 bitop3:%s' % (T0, T0, b + 12, op2),
                    'v_cmp_%s_u32 vcc, 0, v%d' % (cc, T0)]
        T2 = G2.VL
        return ['v_accvgpr_read_b32 v%d, %s' % (T0, r(b)),
                'v_accvgpr_read_b32 v%d, %s' % (T1, r(b + 4)),
                'v_accvgpr_read_b32 v%d, %s' % (T2, r(b + 8)),
                'v_bitop3_b32 v%d, v%d, v%d, v%d bitop3:%s' % (T0, T0, T1, T2, op3),
                'v_accvgpr_read_b32 v%d, %s' % (T1, r(b + 12)),
                'v_bitop3_b32 v%d, v%d, v%d, 1 bitop3:%s' % (T0, T0, T1, op2),
                'v_cmp_%s_u32 vcc, 0, v%d' % (cc, T0)]

    def branch(g):
        lr = A.newlabel('G2_retry')
        A('s_cbranch_vccnz %s' % lr)
        A.label(lr + '_ok')
        inflight = sorted(k for k in issued if k >= g)

        def retry():
            A.label(lr)
            A.reset()
            A('s_sub_u32 s%d, s%d, 1' % (M.S_BUD, M.S_BUD))
            A('s_cbranch_scc1 %s_out' % lr)
            for k in inflight:
                h_load(A, M, k, plan[k])
            A.wait(vm=0)
            for x in check_ops(g):
                A(x)
            A('s_cbranch_vccnz %s' % lr)
            A('s_branch %s_ok' % lr)
            A.label(lr + '_out')
            A('s_mov_b32 s%d, 0' % M.S_BUD)
            A('s_branch %s_ok' % lr)
        A.deferred.append(retry)
    for x in check_ops(0):
        A(x)
    st_skip = None
    for ks in range(14):
        if ks == 12:
            assert not ent
            A('s_cmp_eq_u32 s%d, 3' % M.S_WV)
            A('s_cbranch_scc1 %s' % le)
            st_skip = A.save()
        branch(ks)
        chk = check_ops(ks + 1) if ks < 13 else []
        n = 0
        for rt in range(4):
            for ct in range(5):
                mm(ct, rt, WF[5 * ks + ct], plan[ks] + 4 * rt)
                n += 1
                if n >= 19 - len(chk) and chk:
                    A(chk.pop(0))
                tick(20 * ks + n - 1, (ks + o['ahead'] if ks < 11 else 99) if n == 10 else None)
                if ks == 11 and n == 11:
                    g2_bias_loads(A, M, G2, final)
    A.label(le)
    A.merge(st_skip, A.save())


def g2_finish(A, M, G2, final):
    T = G2.T
    tile = lambda ct, rt: G2.ACC + 4 * (4 * ct + rt)
    owner = (lambda ct, rt: rt) if final else (lambda ct, rt: (rt & 1) + (2 if ct >= 3 else 0))
    slot = lambda ct, rt, src: ((4 * ct + rt) * 3 + (src - owner(ct, rt) - 1) % 4) * 1024
    A.wait(vm=0)
    A('v_add_u32 v%d, %d, v%d' % (G2.VL, RED, M.VL16))
    labs = [A.newlabel('G2_red') for _ in range(4)]
    le = A.newlabel('G2_done')
    for w in range(1, 4):
        A('s_cmp_eq_u32 s%d, %d' % (M.S_WV, w))
        A('s_cbranch_scc1 %s' % labs[w])
    st = A.save()
    ends = []

    def addressing():
        A('v_lshrrev_b32 v%d, 4, v%d' % (T, M.LANE))
        A('v_and_b32 v%d, 15, v%d' % (T + 1, M.LANE))
        if final:
            A('v_mul_u32_u24 v%d, %d, v%d' % (G2.VO, 64 * 1280, T + 1))
            A('v_lshl_add_u32 v%d, v%d, 3, v%d' % (G2.VS, T, G2.VO))
            A('v_lshl_add_u32 v%d, v%d, 4, v%d' % (G2.VO, T, G2.VO))
            A('s_and_b32 s%d, s%d, 1' % (M.S_A, M.S_WV))
            A('s_lshl_b32 s%d, s%d, 5' % (M.S_A, M.S_A))
            A('s_lshr_b32 s%d, s%d, 1' % (M.S_B, M.S_WV))
            A('s_add_u32 s%d, s%d, s%d' % (M.S_A, M.S_A, M.S_B))
            A('s_lshl_b32 s%d, s%d, 5' % (M.S_A, M.S_A))
            A('s_add_u32 s%d, s%d, s%d' % (M.S_A, M.S_A, M.S_T))
            A('s_mul_i32 s%d, s%d, 1280' % (M.S_A, M.S_A))
            A('s_mul_i32 s%d, s%d, 160' % (M.S_B, M.S_N))
            A('s_add_u32 s%d, s%d, s%d' % (M.S_A, M.S_A, M.S_B))
        else:
            A('v_lshlrev_b32 v%d, 4, v%d' % (G2.VO, T + 1))
            A('v_lshrrev_b32 v%d, 1, v%d' % (T + 3, T))
            A('v_lshl_add_u32 v%d, v%d, 10, v%d' % (T + 3, T + 3, G2.VO))
            A('v_and_b32 v%d, 1, v%d' % (T + 2, T))
            A('v_lshl_add_u32 v%d, v%d, 3, v%d' % (T + 3, T + 2, T + 3))
            A('s_mul_i32 s%d, s%d, 10240' % (M.S_A, M.S_N))
            A('v_add_u32 v%d, s%d, v%d' % (T + 3, M.S_A, T + 3))
            A('v_lshl_add_u32 v%d, v%d, 14, v%d' % (G2.VO, T, G2.VO))
            A('s_mul_i32 s%d, s%d, %d' % (M.S_A, M.S_N, 20 * 16384))
            A('s_lshl_b32 s%d, s%d, 9' % (M.S_B, M.S_T))
            A('s_add_u32 s%d, s%d, s%d' % (M.S_A, M.S_A, M.S_B))
            A('v_and_b32 v%d, 7, v%d' % (T + 2, M.LANE))
            A('v_lshlrev_b32 v%d, 5, v%d' % (G2.VS, T + 2))
            A('v_bfe_u32 v%d, v%d, 3, 1' % (T + 2, M.LANE))
            A('v_lshl_add_u32 v%d, v%d, 3, v%d' % (G2.VS, T + 2, G2.VS))
            A('v_and_b32 v%d, 1, v%d' % (T + 2, T))
            A('v_lshl_add_u32 v%d, v%d, 2, v%d' % (G2.VS, T + 2, G2.VS))
            A('v_add_u32 v%d, %d, v%d' % (G2.VS, SQP, G2.VS))
            A('s_cmp_eq_u32 s%d, 0' % M.S_N)
            A('s_cselect_b32 s%d, 16, 0' % M.S_W2)
            A('v_cmp_gt_u32 vcc, s%d, v%d' % (M.S_W2, M.LANE))
            A('v_mov_b32 v%d, 0xffff0000' % (T + 2))
            A('v_cndmask_b32 v%d, -1, v%d, vcc' % (G2.VQ, T + 2))
    for w in range(4):
        A.label(labs[w])
        A.restore(st)
        for rt in range(4):
            for ct in range(5):
                if owner(ct, rt) != w:
                    A('ds_write_b128 v%d, %s offset:%d' % (G2.VL, v(tile(ct, rt), 4), slot(ct, rt, w)))
        addressing()
        own = [(ct, rt) for ct in range(5) for rt in range(4) if owner(ct, rt) == w]
        U = T + 16
        if final:
            for (ct, rt) in own:
                d = tile(ct, rt)
                for h in range(2):
                    src = G2.BI + 2 * ct + h
                    A('v_lshlrev_b32 v%d, 16, v%d' % (U, src))
                    A('v_and_b32 v%d, 0xffff0000, v%d' % (U + 1, src))
                    A('v_pk_add_f32 %s, %s, %s' % (v(d + 2 * h, 2), v(d + 2 * h, 2), v(U, 2)))
        else:
            for k, (ct, rt) in enumerate(own):
                A('ds_read_b64 %s, v%d offset:%d' % (v(U + 4 + 2 * k, 2), T + 3, XT + 2048 * ct + 256 * rt))
            for k, (ct, rt) in enumerate(own):
                d = tile(ct, rt)
                for h in range(2):
                    A('v_pk_add_f32 %s, %s, %s' % (v(d + 2 * h, 2), v(d + 2 * h, 2), v(G2.BI + 4 * ct + 2 * h, 2)))
            for k, (ct, rt) in enumerate(own):
                d = tile(ct, rt)
                for h in range(2):
                    src = U + 4 + 2 * k + h
                    A('v_lshlrev_b32 v%d, 16, v%d' % (U + 2 * h, src))
                    A('v_and_b32 v%d, 0xffff0000, v%d' % (U + 2 * h + 1, src))
                    A('v_pk_add_f32 %s, %s, %s' % (v(d + 2 * h, 2), v(d + 2 * h, 2), v(U + 2 * h, 2)))
        A.wait(lg=0)
        A('s_barrier')
        free = [tile(ct, rt) for ct in range(5) for rt in range(4) if owner(ct, rt) != w] + [T + 4 * i for i in range(4)]
        k = 0
        land = {}
        for (ct, rt) in own:
            for j in range(3):
                land[(ct, rt, j)] = free[k]
                A('ds_read_b128 %s, v%d offset:%d' % (v(free[k], 4), G2.VL, ((4 * ct + rt) * 3 + j) * 1024))
                k += 1
        for (ct, rt) in own:
            d = tile(ct, rt)
            p0, p1, p2 = [land[(ct, rt, j)] for j in range(3)]
            for h in range(2):
                A('v_pk_add_f32 %s, %s, %s' % (v(d + 2 * h, 2), v(d + 2 * h, 2), v(p0 + 2 * h, 2)))
                A('v_pk_add_f32 %s, %s, %s' % (v(p1 + 2 * h, 2), v(p1 + 2 * h, 2), v(p2 + 2 * h, 2)))
            for h in range(2):
                A('v_pk_add_f32 %s, %s, %s' % (v(d + 2 * h, 2), v(d + 2 * h, 2), v(p1 + 2 * h, 2)))
            if final:
                o = G2.BI + 2 * ct
                cvt(A, o, d, d + 1)
                cvt(A, o + 1, d + 2, d + 3)
                if ct in (1, 3):
                    A('buffer_store_dwordx4 %s, v%d, %s, s%d offen offset:%d' % (v(o - 2, 4), G2.VO, M.OUT, M.S_A, 32 * (ct - 1)))
                elif ct == 4:
                    A('buffer_store_dwordx2 %s, v%d, %s, s%d offen offset:128' % (v(o, 2), G2.VS, M.OUT, M.S_A))
            else:
                o = G2.BI + 4 * ct + 2 * (rt >> 1)
                if rt < 2:
                    for h in range(2):
                        A('v_add_u32 v%d, 0x10000, v%d' % (d + h, d + h))
                        A('v_and_b32 v%d, v%d, v%d' % (d + h, M.VM, d + h))
                cvt(A, o, d, d + 1)
                cvt(A, o + 1, d + 2, d + 3)
                if rt >= 2:
                    A('s_add_u32 s%d, s%d, %d' % (M.S_W, M.S_A, ct * 65536))
                    A('buffer_store_dwordx4 %s, v%d, %s, s%d offen offset:%d sc1' % (v(o - 2, 4), G2.VO, M.WS, M.S_W, 256 * (rt & 1)))
        if not final:
            cts = sorted(set(ct for ct, rt in own))
            q0, q1 = free[0], free[0] + 1
            for par, q in ((0, q0), (1, q1)):
                first = True
                for ct in cts:
                    for h in range(2):
                        x = G2.BI + 4 * ct + 2 * par + h
                        if ct == 0 and h == 0:
                            A('v_and_b32 v%d, v%d, v%d' % (free[0] + 2, G2.VQ, x))
                            x = free[0] + 2
                        A('v_dot2_f32_bf16 v%d, v%d, v%d, %s' % (q, x, x, '0' if first else 'v%d' % q))
                        first = False
            A('v_permlane16_swap_b32 v%d, v%d' % (q0, q1))
            A('v_add_f32 v%d, v%d, v%d' % (q0, q0, q1))
            A('v_mov_b32 v%d, v%d' % (q1, q0))
            A('v_permlane32_swap_b32 v%d, v%d' % (q0, q1))
            A('v_add_f32 v%d, v%d, v%d' % (q0, q0, q1))
            A('ds_write_b32 v%d, v%d offset:%d' % (G2.VS, q0, 256 * (w >> 1) + 16 * (w & 1)))
            if w == 3:
                A('v_lshlrev_b32 v%d, 5, v%d' % (T, M.LANE))
                A('v_and_b32 v%d, 0xff, v%d' % (T, T))
                A('v_add_u32 v%d, %d, v%d' % (T, SQP, T))
                A('v_mov_b32 v%d, 0x%x' % (T + 2, OOB))
                A('v_cmp_gt_u32 vcc, 8, v%d' % M.LANE)
                A('v_cndmask_b32 v%d, v%d, v%d, vcc' % (T + 1, T + 2, M.VL16))
                A('s_lshl_b32 s%d, s%d, 7' % (M.S_B, M.S_T))
                A('s_lshl_b32 s%d, s%d, 12' % (M.S_W, M.S_N))
                A('s_add_u32 s%d, s%d, s%d' % (M.S_B, M.S_B, M.S_W))
                A('s_add_u32 s%d, s%d, 0x%x' % (M.S_B, M.S_B, OFF['SSQ2']))
            A.wait(lg=0)
            A('s_barrier')
            if w == 3:
                for k in range(4):
                    A('ds_read_b128 %s, v%d offset:%d' % (v(U + 4 * k, 4), T, 256 * (k >> 1) + 16 * (k & 1)))
                for k in range(4):
                    A('v_pk_add_f32 %s, %s, %s' % (v(U + 2 * k, 2), v(U + 2 * k, 2), v(U + 8 + 2 * k, 2)))
                    cvt(A, T + 4 + k, U + 2 * k, U + 2 * k + 1)
                A('buffer_store_dwordx4 %s, v%d, %s, s%d offen sc1' % (v(T + 4, 4), T + 1, M.WS, M.S_B))
        if w < 3:
            A('s_branch %s' % le)
        ends.append(A.save())
    A.label(le)
    A.merge(*ends)
```

```python
from common import *
from col import *
from mlp import *
from prep import *


class M:
    LANE, VL16, VM, VWA, VWB, VW2, VHR = 1, 2, 3, 4, 5, 6, 7
    S_MK, S_STR = 4, 14
    S_WV, S_T, S_N, S_PA, S_HASB, S_PB = 26, 27, 28, 29, 30, 31
    WS, B1, OUT, B2 = 's[32:35]', 's[36:39]', 's[40:43]', 's[44:47]'
    S_A, S_B, S_C, S_W, S_W2, S_H, S_PSEL, S_BUD = 48, 49, 50, 51, 52, 53, 54, 55
    S_KEEP, S_HT = 56, 58
    S_XTAG, S_EPS, S_LAYER = 60, 61, 63
    S_TADD, S_TOR = 15, 16
    ts = 1


def layer_params(A, layer):
    A('s_mov_b32 s%d, %d' % (M.S_LAYER, layer))
    A('s_mov_b32 s%d, 0x%x' % (M.S_XTAG, 0x10000 if layer else 1))
    A('s_mov_b32 s%d, 0x%x' % (M.S_TADD, 0 if layer else 0x10000))
    A('s_mov_b32 s%d, 0x%x' % (M.S_TOR, 0x10000 if layer else 0))
    if layer == 0:
        A('s_mul_i32 s%d, s%d, %d' % (M.S_H, M.S_T, 216 * 1024))
        A('s_add_u32 s%d, s%d, 0x%x' % (M.S_H, M.S_H, OFF['H']))
        A('s_mul_i32 s%d, s%d, %d' % (M.S_STR, M.S_N, 54 * 5120))
        A('s_mul_i32 s%d, s%d, %d' % (M.S_A, M.S_WV, 14 * 5120))
        A('s_add_u32 s%d, s%d, s%d' % (M.S_STR, M.S_STR, M.S_A))
        A('s_add_u32 s%d, s%d, 0x%x' % (M.S_STR, M.S_STR, OFF['W2F']))
    else:
        A('s_lshl_b32 s%d, s%d, 2' % (M.S_STR, M.S_N))
        A('s_add_u32 s%d, s%d, s%d' % (M.S_STR, M.S_STR, M.S_WV))
        A('s_mul_i32 s%d, s%d, %d' % (M.S_STR, M.S_STR, W2S_W))
        A('s_add_u32 s%d, s%d, 0x%x' % (M.S_STR, M.S_STR, OFF['W2S']))


def emit(A, launches, descs, opts):
    name = 'main_kernel'
    C, G, G2 = ColRegs(8), G1Regs(8), G2Regs()
    assert C.end <= 192 and G.end <= 192
    early = opts.get('early', 20)
    kernel_header(A, name)
    load_args(A)
    stamp_init(A)
    A('v_and_b32 v%d, 63, v0' % M.LANE)
    A('v_lshrrev_b32 v%d, 6, v0' % M.VM)
    A('v_readfirstlane_b32 s%d, v%d' % (M.S_WV, M.VM))
    A('v_lshlrev_b32 v%d, 4, v%d' % (M.VL16, M.LANE))
    A('s_cmp_ge_u32 s2, 256')
    A('s_cbranch_scc1 %s_exit' % name)
    A('s_and_b32 s%d, s2, 7' % M.S_T)
    A('s_lshl_b32 s%d, s%d, 2' % (M.S_T, M.S_T))
    A('s_bfe_u32 s%d, s2, 0x20003' % M.S_N)
    A('s_add_u32 s%d, s%d, s%d' % (M.S_T, M.S_T, M.S_N))
    A('s_lshr_b32 s%d, s2, 5' % M.S_N)
    srd(A, 32, P_WS, WS_USED)
    srd(A, 36, P_B1, F * 2)
    srd(A, 40, P_OUT, S * D * 2)
    srd(A, 44, P_B2, D * 2)
    srd(A, 20, P_W2, WB)
    A('s_mov_b32 s%d, 0x%x' % (M.S_BUD, 1 << 16))
    A('v_mov_b32 v%d, 0x%x' % (M.VM, TAGM))
    g1_setup(A, M)
    layer_params(A, 0)
    A.label('L_layer')
    stamp(A, 0)
    g1_weight_addr(A, M)
    A('s_cmp_ge_u32 s2, 160')
    A('s_cbranch_scc1 L_nocol')
    st = A.save()
    col_addr(A, M, C)
    A('s_cmp_lg_u32 s%d, 0' % M.S_LAYER)
    A('s_cbranch_scc1 L_late')
    col_load_x(A, M, C)
    col_load_q0(A, M, C)
    A.label('L_late')
    col_load_w(A, M, C)
    wl = g1_weight_loads(A, M)
    A.bg, A.bg_every = wl[:early], opts.get('ev1', 8)
    col_tables(A, M, C)
    drain(A.bg)
    col_check(A, M, C, opts.get('csl', 1))
    stamp(A, 1)
    A.bg, A.bg_every = wl[early:], opts.get('ev2', 8)
    col_body(A, M, C)
    A.bg_every = 0
    drain(A.bg)
    stamp(A, 2)
    g1_addr(A, M, G)
    A('s_barrier')
    A('s_branch L_g1')
    st1 = A.save()
    A.label('L_nocol')
    A.restore(st)
    A('s_cmp_eq_u32 s%d, 0' % M.S_LAYER)
    A('s_cbranch_scc1 L_prep')
    drain(g1_weight_loads(A, M))
    A('s_branch L_spin')
    st2 = A.save()
    A.label('L_prep')
    A.restore(st)
    wl = g1_weight_loads(A, M)
    prep_loads(A, M, 8)
    drain(wl, opts.get('pw', 40))
    prep_body(A, M, 8, RED)
    drain(wl)
    prep_flag(A, M, 8)
    A.label('L_spin')
    A.merge(st2, A.save())
    g1_addr(A, M, G)
    g1_prespin(A, M, G)
    stamp(A, 2)
    A.label('L_g1')
    A.merge(st1, A.save())
    g1_bias_loads(A, M, G)
    g1_stage(A, M, G)
    stamp(A, 3)
    o = dict(nf=56, h_at=140, pace=92, pace2=92, late=90, ahead=2)
    o.update(opts.get('o', {}))
    g1_body(A, M, G, o)
    stamp(A, 8)
    A('s_cmp_eq_u32 s%d, 1' % M.S_LAYER)
    A('s_cbranch_scc1 L_final')
    st = A.save()
    g2_main(A, M, G, G2, False, o)
    stamp(A, 9)
    g2_finish(A, M, G2, False)
    stamp(A, 10)
    stamp_save(A)
    flag_check(A, M, 256, G2.T)
    layer_params(A, 1)
    A.wait(lg=0)
    A('s_branch L_layer')
    A.label('L_final')
    A.restore(st)
    o.update(late=0)
    o.update(opts.get('of', {}))
    g2_main(A, M, G, G2, True, o)
    stamp(A, 9)
    g2_finish(A, M, G2, True)
    stamp(A, 10)
    stamp_flush(A, 1, M.WS, M.S_WV, 11)
    A.label('%s_exit' % name)
    A('s_endpgm')
    for f in A.deferred:
        f()
    A.deferred = []
    launches.append('; @launch kernel=%s grid=(256,1,1) block=(256,1,1) lds=%d' % (name, MAIN_LDS))
    descs.append(kernel_desc(name, 512, 256))
```

```python
import math
from common import *
from k1 import cvt, SC

RS = 176
N_PW = 384
W2SRD = 's[20:23]'


def prep_loads(A, M, P0):
    U, T = M.S_MK, P0 + 40
    A('s_sub_u32 s%d, s2, 160' % U)
    A('s_lshl_b32 s%d, s%d, 2' % (U, U))
    A('s_add_u32 s%d, s%d, s%d' % (U, U, M.S_WV))
    A('v_lshrrev_b32 v%d, 1, v%d' % (T, M.LANE))
    A('v_and_b32 v%d, 1, v%d' % (T + 1, M.LANE))
    A('v_lshlrev_b32 v%d, 4, v%d' % (T + 1, T + 1))
    A('v_mul_u32_u24 v%d, 1280, v%d' % (T + 2, T))
    A('v_add_u32 v%d, v%d, v%d' % (T + 2, T + 2, T + 1))
    A('s_cmp_lt_u32 s%d, %d' % (U, 432 - N_PW))
    A('s_cselect_b32 s%d, 0, 0x%x' % (U + 1, OOB))
    A('v_add_u32 v%d, s%d, v%d' % (T + 3, U + 1, T + 2))
    A('s_and_b32 s%d, s%d, 7' % (U + 2, U))
    A('s_mul_i32 s%d, s%d, 160' % (U + 3, U + 2))
    A('s_lshr_b32 s%d, s%d, 3' % (U + 4, U))
    A('s_mul_i32 s%d, s%d, %d' % (U + 5, U + 4, 32 * 1280))
    A('s_add_u32 s%d, s%d, s%d' % (U + 5, U + 5, U + 3))
    A('s_add_u32 s%d, s%d, %d' % (U + 6, U + 5, (N_PW // 8) * 32 * 1280))
    for b in range(2):
        for i in range(5):
            A('buffer_load_dwordx4 %s, v%d, %s, s%d offen offset:%d' % (v(P0 + 20 * b + 4 * i, 4), T + 2 + b, W2SRD, U + 5 + b, 32 * i))


def prep_body(A, M, P0, lds):
    U, T = M.S_MK, P0 + 40
    F0 = P0 + 48
    A('s_mul_i32 s%d, s%d, %d' % (U + 1, M.S_WV, 32 * RS))
    A('s_add_u32 s%d, s%d, %d' % (U + 1, U + 1, lds))
    A('v_mul_u32_u24 v%d, %d, v%d' % (T + 2, RS, T))
    A('v_add3_u32 v%d, v%d, v%d, s%d' % (T + 2, T + 2, T + 1, U + 1))
    A('v_lshrrev_b32 v%d, 4, v%d' % (T, M.LANE))
    A('v_bfe_u32 v%d, v%d, 2, 2' % (T + 1, M.LANE))
    A('v_lshl_add_u32 v%d, v%d, 3, v%d' % (T, T, T + 1))
    A('v_mul_u32_u24 v%d, %d, v%d' % (T, RS, T))
    A('v_add_u32 v%d, s%d, v%d' % (T, U + 1, T))
    A('v_and_b32 v%d, 3, v%d' % (T + 1, M.LANE))
    A('v_lshl_add_u32 v%d, v%d, 4, v%d' % (T + 3, T + 1, T))
    A('v_lshl_add_u32 v%d, v%d, 3, v%d' % (T + 4, T + 1, T))
    A('s_mul_i32 s%d, s%d, %d' % (U + 3, U + 2, 4 * W2S_W))
    A('s_add_u32 s%d, s%d, 0x%x' % (U + 3, U + 3, OFF['W2S'] + 25600))
    l1, l2 = A.newlabel('prep'), A.newlabel('prep')
    st = None
    for b in range(2):
        if b:
            A('s_cmp_ge_u32 s%d, %d' % (U, 432 - N_PW))
            A('s_cbranch_scc1 %s' % l1)
            st = A.save()
            A('s_add_u32 s%d, s%d, %d' % (U + 4, U + 4, N_PW // 8))
        A('s_mul_i32 s%d, s%d, 74' % (U + 5, U + 4))
        A('s_lshr_b32 s%d, s%d, 10' % (U + 5, U + 5))
        A('s_mul_i32 s%d, s%d, 25600' % (U + 5, U + 5))
        A('s_mul_i32 s%d, s%d, 5120' % (U + 6, U + 4))
        A('s_add_u32 s%d, s%d, s%d' % (U + 5, U + 5, U + 6))
        A('s_add_u32 s%d, s%d, s%d' % (U + 5, U + 5, U + 3))
        A('s_add_u32 s%d, s%d, 4096' % (U + 6, U + 5))
        for i in range(5):
            A('ds_write_b128 v%d, %s offset:%d' % (T + 2, v(P0 + 20 * b + 4 * i, 4), 32 * i))
        A.wait(lg=0)
        for ct in range(5):
            for h in range(2):
                off = (128 if ct == 4 else 64 * (ct >> 1) + 8 * (ct & 1)) + 4 * RS * h
                A('ds_read_b64_tr_b16 %s, v%d offset:%d' % (v(F0 + 20 * b + 4 * ct + 2 * h, 2), T + 4 if ct == 4 else T + 3, off))
        for ct in range(5):
            A('buffer_store_dwordx4 %s, v%d, %s, s%d offen offset:%d sc1' % (v(F0 + 20 * b + 4 * ct, 4), M.VL16, M.WS, U + 6 if ct == 4 else U + 5, (ct & 3) * 1024))
    A.label(l1)
    A.merge(st, A.save())
    A('s_cmp_lt_u32 s%d, %d' % (U, N_PW - 160))
    A('s_cbranch_scc1 %s' % l2)
    st = A.save()
    KK, OT = P0, P0 + 88
    DP, DN, CS, SN, T0, T1, T4, T5 = [P0 + 4 + i for i in range(8)]
    I, S0 = U + 1, U + 2
    A('s_sub_u32 s%d, s%d, %d' % (I, U, N_PW - 160))
    A('s_mul_i32 s%d, s%d, 205' % (S0, I))
    A('s_lshr_b32 s%d, s%d, 12' % (S0, S0))
    A('s_mul_i32 s%d, s%d, 20' % (S0 + 1, S0))
    A('s_sub_u32 s%d, s%d, s%d' % (S0 + 1, I, S0 + 1))
    A('s_add_u32 s%d, s%d, 310' % (S0 + 2, S0 + 1))
    A('s_cmp_ge_u32 s%d, 11' % (S0 + 1))
    A('s_cselect_b32 s%d, s%d, s%d' % (S0 + 2, S0 + 2, S0 + 1))
    A('s_cselect_b32 s%d, %s, %s' % (S0 + 3, fl(SC), '0'))
    A('s_cselect_b32 s%d, s%d, %s' % (S0 + 3, S0 + 3, fl(-SC)))
    A('v_lshrrev_b32 v%d, 4, v%d' % (T0, M.LANE))
    A('v_mul_u32_u24 v%d, 40, v%d' % (T0, T0))
    A('v_add_u32 v%d, s%d, v%d' % (T0, S0 + 2, T0))
    A('v_cvt_f32_u32 v%d, v%d' % (KK, T0))
    A('v_add_f32 v%d, %s, v%d' % (KK + 1, fl(20), KK))
    A('v_add_f32 v%d, %s, v%d' % (KK + 2, fl(160), KK))
    A('v_add_f32 v%d, %s, v%d' % (KK + 3, fl(180), KK))
    A('s_mul_i32 s%d, s%d, 80' % (S0, S0))
    A('v_and_b32 v%d, 15, v%d' % (T0, M.LANE))
    A('v_add_u32 v%d, s%d, v%d' % (T1, S0, T0))
    A('v_cvt_f32_u32 v%d, v%d' % (DN, T1))
    A('v_and_b32 v%d, 12, v%d' % (T0, M.LANE))
    A('v_add_u32 v%d, v%d, v%d' % (T1, T1, T0))
    A('v_cvt_f32_u32 v%d, v%d' % (DP, T1))
    A('s_mul_i32 s%d, s%d, 205' % (S0, I))
    A('s_lshr_b32 s%d, s%d, 10' % (S0, S0))
    A('s_mul_i32 s%d, s%d, %d' % (S0, S0, W2S_W - 25600))
    A('s_mul_i32 s%d, s%d, 5120' % (S0 + 4, I))
    A('s_add_u32 s%d, s%d, s%d' % (S0, S0, S0 + 4))
    A('s_add_u32 s%d, s%d, 0x%x' % (S0, S0, OFF['W2S']))
    A('s_add_u32 s%d, s%d, 4096' % (S0 + 4, S0))
    hb = f2u(math.sqrt(1.0 / 640))
    hb = (hb + 0x7fff + ((hb >> 16) & 1)) >> 16
    A('v_and_b32 v%d, 1, v%d' % (T0, M.LANE))
    A('v_lshlrev_b32 v%d, 31, v%d' % (T0, T0))
    A('v_or_b32 v%d, 0x%x, v%d' % (T5, hb * 0x10001, T0))
    A('s_cmp_eq_u32 s%d, 0' % (S0 + 1))
    A('s_cselect_b32 s%d, 16, 0' % (S0 + 5))
    A('v_cmp_gt_u32 vcc, s%d, v%d' % (S0 + 5, M.LANE))
    for ct in range(5):
        dof = 64 if ct == 4 else 32 * (ct >> 1) + 4 * (ct & 1)
        A('v_add_f32 v%d, %s, v%d' % (T4, fl(dof), DN if ct == 4 else DP))
        for i in range(4):
            A('v_mul_f32 v%d, v%d, v%d' % (T0, T4, KK + i))
            A('v_mul_f32 v%d, %s, v%d' % (T1, fl(1.0 / 640), T0))
            A('v_floor_f32 v%d, v%d' % (T1, T1))
            A('v_fmamk_f32 v%d, v%d, %s, v%d' % (T0, T1, fl(-640), T0))
            A('v_mul_f32 v%d, %s, v%d' % (T0, fl(1.0 / 640), T0))
            A('v_cos_f32 v%d, v%d' % (CS, T0))
            A('v_sin_f32 v%d, v%d' % (SN, T0))
            A('v_mul_f32 v%d, %s, v%d' % (CS, fl(SC), CS))
            A('v_mul_f32 v%d, s%d, v%d' % (SN, S0 + 3, SN))
            cvt(A, OT + 4 * ct + i, CS, SN)
        A('v_cndmask_b32 v%d, v%d, v%d, vcc' % (OT + 4 * ct, OT + 4 * ct, T5))
        A('buffer_store_dwordx4 %s, v%d, %s, s%d offen offset:%d sc1' % (v(OT + 4 * ct, 4), M.VL16, M.WS, S0 + 4 if ct == 4 else S0, (ct & 3) * 1024))
    A.label(l2)
    A.merge(st, A.save())


def prep_flag(A, M, P0):
    U = M.S_MK
    A('v_mov_b32 v%d, 0' % P0)
    A('v_mov_b32 v%d, 0x%x' % (P0 + 1, OOB))
    A('v_cmp_eq_u32 vcc, 0, v%d' % M.LANE)
    A('v_cndmask_b32 v%d, v%d, v%d, vcc' % (P0 + 1, P0 + 1, P0))
    A('s_lshl_b32 s%d, s%d, 2' % (U + 1, U))
    A('s_add_u32 s%d, s%d, 0x%x' % (U + 1, U + 1, OFF['FLG']))
    A.wait(vm=0)
    A('buffer_store_dword v%d, v%d, %s, s%d offen sc1' % (P0, P0 + 1, M.WS, U + 1))


def flag_loads(A, M, dst, T):
    A('v_mul_u32_u24 v%d, 24, v%d' % (T, M.LANE))
    A('s_mov_b32 s%d, 0x%x' % (M.S_A, OFF['FLG']))
    for h in range(2):
        A('buffer_load_dwordx3 %s, v%d, %s, s%d offen offset:%d sc1' % (r(dst + 4 * h, 3), T, M.WS, M.S_A, 12 * h))


def flag_check(A, M, dst, T):
    lc, lr = A.newlabel('flg'), A.newlabel('flg_retry')
    A.label(lc)
    for k, i in enumerate((0, 1, 2, 4, 5, 6)):
        A('v_accvgpr_read_b32 v%d, %s' % (T + k, r(dst + i)))
    A('v_or3_b32 v%d, v%d, v%d, v%d' % (T, T, T + 1, T + 2))
    A('v_or3_b32 v%d, v%d, v%d, v%d' % (T + 3, T + 3, T + 4, T + 5))
    A('v_or_b32 v%d, v%d, v%d' % (T, T, T + 3))
    A('v_cmp_ne_u32 vcc, 0, v%d' % T)
    A('s_cbranch_vccnz %s' % lr)
    A.label(lc + '_ok')

    def retry():
        A.label(lr)
        A.reset()
        A('s_sub_u32 s%d, s%d, 1' % (M.S_BUD, M.S_BUD))
        A('s_cbranch_scc1 %s_out' % lr)
        A('s_sleep 4')
        flag_loads(A, M, dst, T)
        A.wait(vm=0)
        A('s_branch %s' % lc)
        A.label(lr + '_out')
        A('s_mov_b32 s%d, 0' % M.S_BUD)
        A('s_branch %s_ok' % lc)
    A.deferred.append(retry)
```

```python
import sys
from common import *
import k1

NAME = 'interleave_layers__spectral_gfnet__mixer_channel_mlp__prompt'


def build(opts):
    A = Asm()
    A.ts = opts.get('ts', False)
    A.fmode = opts.get('fmode', 'z')
    A.fsleep = opts.get('fsleep', 0)
    A.fillsc = opts.get('fillsc', ' sc1')
    A.drop = opts.get('drop', ())
    launches, descs = [], []
    nv = k1.emit_k1(A, 'prep_kernel')
    launches.append('; @launch kernel=prep_kernel grid=(%d,1,1) block=(256,1,1) lds=%d' % (k1.K1_GRID, k1.K1_LDS))
    descs.append(kernel_desc('prep_kernel', nv, nv))
    if opts.get('main', True):
        import pm
        pm.emit(A, launches, descs, opts)
    head = ['; GFNet spectral filter + channel MLP, two interleaved layers, residual stream kept in the row-spectrum basis.']
    head += launches
    if A.ts:
        head += ['; tsoff=%d' % OFF['TS'], '; order=%s' % ','.join(k1.ORDER)]
    head += ['.amdgcn_target "amdgcn-amd-amdhsa--gfx950"', '.text']
    return '\n'.join(head) + '\n' + A.text() + '.section .rodata,"a"\n.p2align 6\n' + '.p2align 6\n'.join(descs)


if __name__ == '__main__':
    opts = {}
    out = 'cdna_kernels/%s.s' % NAME
    for x in sys.argv[1:]:
        k, _, val = x.partition('=')
        if k == 'out':
            out = val
        else:
            opts[k] = eval(val)
    t = build(opts)
    open(out, 'w').write(t)
    print('wrote', out, len(t), 'bytes')
```
